```python
import torch

def _softmax(x, axis=-1):
    return torch.softmax(x, dim=axis)
def _gelu(x):
    return torch.nn.functional.gelu(x, approximate="tanh")
def _silu(x):
    return torch.nn.functional.silu(x)
def _sigmoid(x):
    return torch.sigmoid(x)
def _layernorm(x, axis=-1, eps=1e-5):
    m = x.mean(dim=axis, keepdim=True)
    v = x.var(dim=axis, keepdim=True, unbiased=False)
    return (x - m) / torch.sqrt(v + eps)
def _scatter_add(tgt, idx, src, axis=0):
    return tgt.clone().index_add_(axis, idx, src)
def _segment_sum(src, seg, n):
    out = torch.zeros((n,) + src.shape[1:], dtype=src.dtype)
    return out.index_add_(0, seg, src)
def _pad(x, pw):
    flat = tuple(v for pair in reversed(pw) for v in pair)
    return torch.nn.functional.pad(x, flat)

kernel_name = 'concat_heads__mha_block_cached__gqa_block_cached__decode'

def setup_inputs():

    _w = (lambda a: (lambda t: t.to(torch.bfloat16) if t.is_floating_point() else t)(torch.as_tensor(a)))
    def _A_setup():
        B, Sq, D = 8, 1, 512
        H, Sk, Dh = 32, 4096, 128
        return {
            "x": _w((lambda *s: torch.randn(*s, dtype=torch.bfloat16) * 0.8)(B, Sq, D)),
            "k_cache": _w((lambda *s: torch.randn(*s, dtype=torch.bfloat16) * 0.8)(B, H, Sk, Dh)),
            "v_cache": _w((lambda *s: torch.randn(*s, dtype=torch.bfloat16) * 0.05)(B, H, Sk, Dh)),
            "wq": _w((lambda *s: torch.randn(*s, dtype=torch.bfloat16) * 0.8)(D, H * Dh) * (D ** -0.5)),
            "wo": _w((lambda *s: torch.randn(*s, dtype=torch.bfloat16) * 0.05)(H * Dh, D) * ((H * Dh) ** -0.5)),
        }
    _A_in = _A_setup()

    def _B_setup():
        B, Sq, D = 8, 1, 512
        Hq, Hkv, Sk, Dh = 32, 8, 4096, 128
        assert Hq % Hkv == 0, (Hq, Hkv)
        return {
            "x": _w((lambda *s: torch.randn(*s, dtype=torch.bfloat16) * 0.8)(B, Sq, D)),
            "k_cache": _w((lambda *s: torch.randn(*s, dtype=torch.bfloat16) * 0.8)(B, Hkv, Sk, Dh)),
            "v_cache": _w((lambda *s: torch.randn(*s, dtype=torch.bfloat16) * 0.05)(B, Hkv, Sk, Dh)),
            "wq": _w((lambda *s: torch.randn(*s, dtype=torch.bfloat16) * 0.8)(D, Hq * Dh) * (D ** -0.5)),
            "wo": _w((lambda *s: torch.randn(*s, dtype=torch.bfloat16) * 0.05)(Hq * Dh, D) * ((Hq * Dh) ** -0.5)),
        }
    _B_in = _B_setup()

    return {
        "A_x": _A_in["x"],
        "A_k_cache": _A_in["k_cache"],
        "A_v_cache": _A_in["v_cache"],
        "A_wq": _A_in["wq"],
        "A_wo": _A_in["wo"],
        "B_x": _B_in["x"],
        "B_k_cache": _B_in["k_cache"],
        "B_v_cache": _B_in["v_cache"],
        "B_wq": _B_in["wq"],
        "B_wo": _B_in["wo"],
    }

def reference(A_x, A_k_cache, A_v_cache, A_wq, A_wo, B_x, B_k_cache, B_v_cache, B_wq, B_wo):
    def _A_ref(x, k_cache, v_cache, wq, wo):
        B, Sq, D = x.shape
        H, Dh = 32, 128
        q = (lambda x, *d: x.permute(*d))((x @ wq).reshape(B, Sq, H, Dh), 0, 2, 1, 3)
        scores = torch.einsum("bhqd,bhkd->bhqk", q, k_cache) * (Dh ** -0.5)
        p = _softmax(scores, axis=-1)
        o = torch.einsum("bhqk,bhkd->bhqd", p, v_cache)
        return (lambda x, *d: x.permute(*d))(o, 0, 2, 1, 3).reshape(B, Sq, H * Dh) @ wo

    def _B_ref(x, k_cache, v_cache, wq, wo):
        B, Sq, D = x.shape
        Hq, Dh = 32, 128
        Hkv = k_cache.shape[1]
        rep = Hq // Hkv
        q = (lambda x, *d: x.permute(*d))((x @ wq).reshape(B, Sq, Hq, Dh), 0, 2, 1, 3)
        k = (lambda x, n, axis: torch.repeat_interleave(x, n, dim=axis))(k_cache, rep, axis=1)
        v = (lambda x, n, axis: torch.repeat_interleave(x, n, dim=axis))(v_cache, rep, axis=1)
        scores = torch.einsum("bhqd,bhkd->bhqk", q, k) * (Dh ** -0.5)
        p = _softmax(scores, axis=-1)
        o = torch.einsum("bhqk,bhkd->bhqd", p, v)
        return (lambda x, *d: x.permute(*d))(o, 0, 2, 1, 3).reshape(B, Sq, Hq * Dh) @ wo

    a = _A_ref(A_x, A_k_cache, A_v_cache, A_wq, A_wo)
    b = _B_ref(B_x, B_k_cache, B_v_cache, B_wq, B_wo)
    return torch.concatenate([a, b], axis=-1)
```

```python
import sys, math, struct
NAME = "concat_heads__mha_block_cached__gqa_block_cached__decode_kernel"

HEADER = """\
"""

def f32bits(x):
    return struct.unpack("<I", struct.pack("<f", x))[0]

class Asm:
    def __init__(self):
        self.L = []
    def __call__(self, s):
        self.L.append("  " + s)
    def label(self, s):
        self.L.append(s + ":")
    def c(self, s):
        self.L.append("  ; " + s)
    def text(self):
        return "\n".join(self.L) + "\n"

def vr(b, n=1):
    return f"v{b}" if n == 1 else f"v[{b}:{b+n-1}]"
def sr(b, n=1):
    return f"s{b}" if n == 1 else f"s[{b}:{b+n-1}]"

L_QA = 0
L_QB = 2048
L_PA = 3072
L_MLA = 5120
L_MLB = 5184
L_CNT = 5376
L_PB = 8192
LDS_BYTES = 16384
W_PB = 0
W_YA = 1 << 20
W_YB = (1 << 20) + (1 << 19)
W_QB = 2 << 20
W_TS = 4 << 20
D_GRP = 0
D_CB = 64
D_CA = 128

def gen(RB=4, D=3, PT=4, nA1=12, nA2=12, kvflags="nt", wflags="", qbPD=4, prio=0, ts=False, sleep=64, now=0, nocomp=0, xcc=0, noqx=0, nobx=0, noax=0):
    assert RB % 2 == 0 and D <= RB - 1 and PT % 2 == 0
    PP = RB // 2
    assert (nA1 - PT // 2) % PP == 0 and (64 - nA1 - nA2) % PP == 0 and nA2 % PP == 0 and 16 % PP == 0
    assert (PT + D) * 4 <= 60
    A = Asm()
    A.L.append(HEADER.rstrip("\n"))
    A.L.append(f"; @launch grid=(256,1,1) block=(512,1,1) lds={LDS_BYTES}")
    A.L += ['.amdgcn_target "amdgcn-amd-amdhsa--gfx950"', ".text", f".globl {NAME}", ".p2align 8",
            f".type {NAME},@function", f"{NAME}:"]
    S_WAVE = 3
    P_AX, P_AK, P_AV, P_AWQ, P_AWO, P_BX, P_BK, P_BV, P_BWQ, P_BWO, P_OUT, P_DBG, P_WS = [4 + 2 * i for i in range(13)]
    A("s_cmp_ge_u32 s2, 256")
    A("s_cbranch_scc1 L_end")
    A("s_load_dwordx16 s[4:19], s[0:1], 0")
    A("s_load_dwordx8 s[20:27], s[0:1], 64")
    A("s_load_dwordx2 s[28:29], s[0:1], 96")
    A("v_lshrrev_b32 v1, 6, v0")
    A("v_and_b32 v2, 63, v0")
    A("v_readfirstlane_b32 s3, v1")
    S_X, S_S, S_B = 30, 31, 60
    A(f"s_and_b32 s{S_X}, s2, 7")
    A(f"s_bfe_u32 s{S_S}, s2, 0x20003")
    A(f"s_lshr_b32 s{S_B}, s2, 5")
    S_H = 61
    A(f"s_lshl_b32 s{S_H}, s{S_S}, 3")
    A(f"s_add_u32 s{S_H}, s{S_H}, s{S_X}")
    A("s_cmp_ge_u32 s3, 4")
    A("s_cbranch_scc1 L_helper")

    tsn = [0]
    def stamp(slot, vtmp):
        if not ts: return
        A("s_memrealtime s[70:71]")
        A("s_waitcnt lgkmcnt(0)")
        A(f"v_mov_b32 v{vtmp}, s70")
        A(f"s_lshl_b32 s72, s2, 3")
        A(f"s_add_u32 s72, s72, s3")
        A(f"s_lshl_b32 s72, s72, 6")
        A(f"s_add_u32 s72, s72, {W_TS + slot * 4}")
        A(f"v_mov_b32 v{vtmp+1}, s72")
        A("s_mov_b64 s[74:75], exec")
        A("s_mov_b64 exec, 1")
        A(f"global_store_dword v{vtmp+1}, v{vtmp}, s[{P_WS}:{P_WS+1}]")
        A("s_mov_b64 exec, s[74:75]")
        return 1

    def build_masks(MA, vj, vt):
        A(f"v_and_b32 v{vt}, 1, v{vj}")
        A(f"v_cmp_eq_u32 vcc, 1, v{vt}")
        A(f"v_mov_b32 v{vt}, 0xffff")
        A(f"v_mov_b32 v{vt+1}, 0xffff0000")
        A(f"v_cndmask_b32 v{vt}, v{vt}, v{vt+1}, vcc")
        A(f"v_bfe_u32 v{vt+1}, v{vj}, 1, 3")
        for k in range(8):
            A(f"v_cmp_eq_u32 vcc, {k}, v{vt+1}")
            A("s_nop 1")
            A(f"v_cndmask_b32 v{MA+k}, 0, v{vt}, vcc")

    def bank_reduce(src, dst, Ta, Tb):
        A(f"v_add_f32_dpp v{Ta}, v{src[0]}, v{src[0]} row_ror:8 row_mask:0xf bank_mask:0x3")
        A(f"v_add_f32_dpp v{Tb}, v{src[1]}, v{src[1]} row_ror:8 row_mask:0xf bank_mask:0x3")
        A(f"v_add_f32_dpp v{Ta}, v{src[2]}, v{src[2]} row_ror:8 row_mask:0xf bank_mask:0xc")
        A(f"v_add_f32_dpp v{Tb}, v{src[3]}, v{src[3]} row_ror:8 row_mask:0xf bank_mask:0xc")
        A("s_nop 0")
        A(f"v_add_f32_dpp v{dst}, v{Ta}, v{Ta} row_shl:4 row_mask:0xf bank_mask:0x5")
        A(f"v_add_f32_dpp v{dst}, v{Tb}, v{Tb} row_shr:4 row_mask:0xf bank_mask:0xa")

    V_OFF = 1
    V_LANE = 2
    QA = 4
    QB = 8
    MA = 24
    MB = 32
    M_A, L_A, M_B, L_B = 34, 35, 36, 37
    DA = 40
    DB = 48
    SS = 56
    TT = 72
    UU = 80
    BOP = 84
    T1, T2, MN, AL = 100, 101, 102, 104
    PPv = 106
    VADDR = 110
    RING = 112
    TMP = RING + RB * 16
    assert TMP + PT * 16 <= 256, (TMP, PT)
    SK, SV = 32, 36
    S_OFF, S_CNT, S_T, S_PH = 40, 41, 42, 43
    N_K, N_V, N_NUM, N_OFF = 44, 46, 48, 49
    S_C, S_OFFA, S_OFFB = 50, 51, 52

    def breg(t):
        return TMP + t * 16 if t < PT else RING + ((t - PT) % RB) * 16
    def issue(base, isV, pair_in_iter, soff=None):
        s = SV if isV else SK
        if pair_in_iter == 0:
            so = f"s{S_OFF}"
        else:
            A(f"s_add_u32 s{S_T}, s{S_OFF}, {pair_in_iter * 16384}")
            so = f"s{S_T}"
        for j in range(4):
            A(f"buffer_load_dwordx4 {vr(base + 4 * j, 4)}, v{V_OFF}, {sr(s, 4)}, {so} offen offset:{j * 1024} {kvflags}".rstrip())

    A.c("---------------- streamer ----------------")
    A(f"v_lshlrev_b32 v{V_OFF}, 4, v{V_LANE}")
    A(f"s_lshl_b32 s{S_T}, s3, 12")
    A(f"v_add_u32 v{V_OFF}, s{S_T}, v{V_OFF}")
    A(f"s_lshl_b32 s{S_OFFA}, s{S_B}, 5")
    A(f"s_add_u32 s{S_OFFA}, s{S_OFFA}, s{S_H}")
    A(f"s_lshl_b32 s{S_OFFA}, s{S_OFFA}, 20")
    A(f"s_mov_b32 s{S_OFF}, s{S_OFFA}")
    A(f"s_mov_b32 s{SK+2}, {256 << 20}")
    A(f"s_mov_b32 s{SK+3}, 0x00020000")
    A(f"s_mov_b32 s{SV+2}, {256 << 20}")
    A(f"s_mov_b32 s{SV+3}, 0x00020000")
    A("s_waitcnt lgkmcnt(0)")
    A(f"s_mov_b64 {sr(SK, 2)}, {sr(P_AK, 2)}")
    A(f"s_mov_b64 {sr(SV, 2)}, {sr(P_AV, 2)}")
    for t in range(PT + D):
        issue(breg(t), t & 1, t // 2)
    if prio: A(f"s_setprio {prio}")
    if ts: A("s_memrealtime s[76:77]")
    A(f"s_add_u32 s{S_OFF}, s{S_OFF}, {PT // 2 * 16384}")
    A(f"s_lshl_b32 s{S_OFFB}, s{S_B}, 3")
    A(f"s_add_u32 s{S_OFFB}, s{S_OFFB}, s{S_X}")
    A(f"s_lshl_b32 s{S_OFFB}, s{S_OFFB}, 2")
    A(f"s_add_u32 s{S_OFFB}, s{S_OFFB}, s{S_S}")
    A(f"s_lshl_b32 s{S_OFFB}, s{S_OFFB}, 18")
    A(f"s_mov_b32 s{S_C}, {f32bits(math.log2(math.e) / math.sqrt(128.0)):#x}")
    build_masks(MA, V_LANE, T1)
    A(f"v_or_b32 v{MB}, v{MA}, v{MA+2}")
    A(f"v_or3_b32 v{MB}, v{MB}, v{MA+4}, v{MA+6}")
    A(f"v_or_b32 v{MB+1}, v{MA+1}, v{MA+3}")
    A(f"v_or3_b32 v{MB+1}, v{MB+1}, v{MA+5}, v{MA+7}")
    for r in (M_A, M_B):
        A(f"v_mov_b32 v{r}, 0xff800000")
    for r in [L_A, L_B] + list(range(DA, DA + 8)) + list(range(DB, DB + 8)):
        A(f"v_mov_b32 v{r}, 0")
    A(f"v_and_b32 v{VADDR}, 15, v{V_LANE}")
    A(f"v_lshlrev_b32 v{VADDR}, 5, v{VADDR}")
    A("s_barrier")
    for w in range(4):
        A(f"ds_read_b128 {vr(SS + 8 * (w & 1) + 0, 4) if w < 2 else vr(TT + 8 * (w & 1), 4)}, v{VADDR} offset:{L_QA + w * 512}")
        A(f"ds_read_b128 {vr(SS + 8 * (w & 1) + 4, 4) if w < 2 else vr(TT + 8 * (w & 1) + 4, 4)}, v{VADDR} offset:{L_QA + w * 512 + 16}")
    A("s_waitcnt lgkmcnt(0)")
    for i in range(8):
        A(f"v_add_f32 v{SS+i}, v{SS+i}, v{SS+8+i}")
        A(f"v_add_f32 v{TT+i}, v{TT+i}, v{TT+8+i}")
    for i in range(8):
        A(f"v_add_f32 v{SS+i}, v{SS+i}, v{TT+i}")
    for i in range(4):
        A(f"v_cvt_pk_bf16_f32 v{QA+i}, v{SS+2*i}, v{SS+2*i+1}")
    nst = 0
    if ts:
        stamp(0, T1); nst = 2
        A(f"v_mov_b32 v{T1}, s76")
        A("s_mov_b64 exec, 1")
        A(f"global_store_dword v{T1+1}, v{T1}, s[{P_WS}:{P_WS+1}] offset:16")
        A("s_getreg_b32 s76, hwreg(HW_REG_XCC_ID)")
        A(f"v_mov_b32 v{T1}, s76")
        A(f"global_store_dword v{T1+1}, v{T1}, s[{P_WS}:{P_WS+1}] offset:20")
        A("s_getreg_b32 s76, hwreg(HW_REG_HW_ID)")
        A(f"v_mov_b32 v{T1}, s76")
        A(f"global_store_dword v{T1+1}, v{T1}, s[{P_WS}:{P_WS+1}] offset:24")
        nst = 4
        A("s_mov_b64 exec, -1")

    def softmax_tail(S, M, Lr, Dd, nS):
        A("s_nop 1")
        A(f"v_permlane16_swap_b32 v{T1}, v{T2}")
        A(f"v_max_f32 v{T1}, v{T1}, v{T2}")
        A(f"v_mov_b32 v{T2}, v{T1}")
        A("s_nop 1")
        A(f"v_permlane32_swap_b32 v{T1}, v{T2}")
        A(f"v_max3_f32 v{MN}, v{T1}, v{T2}, v{M}")
        A(f"v_sub_f32 v{AL}, v{M}, v{MN}")
        for i, s in enumerate(S):
            A(f"v_sub_f32 v{PPv+i}, v{s}, v{MN}")
        A(f"v_exp_f32 v{AL}, v{AL}")
        for i in range(len(S)):
            A(f"v_exp_f32 v{PPv+i}, v{PPv+i}")
        A(f"v_mov_b32 v{M}, v{MN}")
        A(f"v_fma_f32 v{Lr}, v{Lr}, v{AL}, v{PPv}")
        for i in range(4):
            A(f"v_pk_mul_f32 {vr(Dd + 2 * i, 2)}, {vr(Dd + 2 * i, 2)}, {vr(AL, 2)} op_sel_hi:[1,0]")
        for i in range(1, len(S)):
            A(f"v_add_f32 v{Lr}, v{Lr}, v{PPv+i}")

    def qk_A(kb):
        if nocomp: return
        for i in range(4):
            for u in range(4):
                if i == 0:
                    A(f"v_dot2_f32_bf16 v{SS+u}, v{kb+4*u}, v{QA}, 0")
                else:
                    A(f"v_dot2c_f32_bf16 v{SS+u}, v{kb+4*u+i}, v{QA+i}")
        bank_reduce([SS, SS + 1, SS + 2, SS + 3], UU, TT, TT + 1)
        A("s_nop 1")
        A(f"v_add_f32_dpp v{UU}, v{UU}, v{UU} quad_perm:[1,0,3,2] row_mask:0xf bank_mask:0xf")
        A("s_nop 1")
        A(f"v_add_f32_dpp v{UU}, v{UU}, v{UU} quad_perm:[2,3,0,1] row_mask:0xf bank_mask:0xf")
        A(f"v_mul_f32 v{SS}, s{S_C}, v{UU}")
        A(f"v_mul_f32 v{T1}, s{S_C}, v{UU}")
        A(f"v_mul_f32 v{T2}, s{S_C}, v{UU}")
        softmax_tail([SS], M_A, L_A, DA, 1)
        A(f"v_cvt_pk_bf16_f32 v{T1}, v{PPv}, v{PPv}")
        for k in range(8):
            A(f"v_and_b32 v{BOP+k}, v{T1}, v{MA+k}")
    def pv(vb, Dd):
        if nocomp: return
        for u in range(4):
            A(f"v_mfma_f32_16x16x16_bf16 {vr(Dd, 4)}, {vr(vb + 4 * u, 2)}, {vr(BOP + 2 * u, 2)}, {vr(Dd, 4)}")
            A(f"v_mfma_f32_16x16x16_bf16 {vr(Dd + 4, 4)}, {vr(vb + 4 * u + 2, 2)}, {vr(BOP + 2 * u, 2)}, {vr(Dd + 4, 4)}")
    def qk_B(kb):
        if nocomp: return
        for u in range(4):
            for i in range(4):
                for h in range(4):
                    if i == 0:
                        A(f"v_dot2_f32_bf16 v{SS+4*u+h}, v{kb+4*u}, v{QB+4*h}, 0")
                    else:
                        A(f"v_dot2c_f32_bf16 v{SS+4*u+h}, v{kb+4*u+i}, v{QB+4*h+i}")
        for u in range(4):
            s = SS + 4 * u
            A(f"v_add_f32_dpp v{TT+2*u}, v{s}, v{s} row_ror:8 row_mask:0xf bank_mask:0x3")
            A(f"v_add_f32_dpp v{TT+2*u+1}, v{s+1}, v{s+1} row_ror:8 row_mask:0xf bank_mask:0x3")
            A(f"v_add_f32_dpp v{TT+2*u}, v{s+2}, v{s+2} row_ror:8 row_mask:0xf bank_mask:0xc")
            A(f"v_add_f32_dpp v{TT+2*u+1}, v{s+3}, v{s+3} row_ror:8 row_mask:0xf bank_mask:0xc")
        for u in range(4):
            A(f"v_add_f32_dpp v{UU+u}, v{TT+2*u}, v{TT+2*u} row_shl:4 row_mask:0xf bank_mask:0x5")
        for u in range(4):
            A(f"v_add_f32_dpp v{UU+u}, v{TT+2*u+1}, v{TT+2*u+1} row_shr:4 row_mask:0xf bank_mask:0xa")
        for u in range(4):
            A(f"v_add_f32_dpp v{UU+u}, v{UU+u}, v{UU+u} quad_perm:[1,0,3,2] row_mask:0xf bank_mask:0xf")
        for u in range(4):
            A(f"v_add_f32_dpp v{UU+u}, v{UU+u}, v{UU+u} quad_perm:[2,3,0,1] row_mask:0xf bank_mask:0xf")
        for u in range(4):
            A(f"v_mul_f32 v{SS+u}, s{S_C}, v{UU+u}")
        A(f"v_max3_f32 v{T1}, v{SS}, v{SS+1}, v{SS+2}")
        A(f"v_max_f32 v{T1}, v{T1}, v{SS+3}")
        A(f"v_mov_b32 v{T2}, v{T1}")
        softmax_tail([SS, SS + 1, SS + 2, SS + 3], M_B, L_B, DB, 4)
        for u in range(4):
            A(f"v_cvt_pk_bf16_f32 v{SS+u}, v{PPv+u}, v{PPv+u}")
        for u in range(4):
            A(f"v_and_b32 v{BOP+2*u}, v{SS+u}, v{MB}")
            A(f"v_and_b32 v{BOP+2*u+1}, v{SS+u}, v{MB+1}")

    extra = nst
    for t in range(PT):
        A(f"s_waitcnt vmcnt({(PT + D - 1 - t) * 4 + extra})")
        if t & 1:
            A("s_nop 0")
            pv(breg(t), DA)
        else:
            qk_A(breg(t))
    if ts:
        A("s_nop 7")
    def set_next(kp, vp, num, off_expr):
        A(f"s_mov_b64 {sr(N_K, 2)}, {sr(kp, 2)}")
        A(f"s_mov_b64 {sr(N_V, 2)}, {sr(vp, 2)}")
        A(f"s_mov_b32 s{N_NUM}, {num}")
        A(off_expr)
    A(f"s_mov_b32 s{S_CNT}, {(nA1 - PT // 2) // PP}")
    A(f"s_mov_b32 s{S_PH}, 0")
    set_next(P_BK, P_BV, 64 << 20, f"s_mov_b32 s{N_OFF}, s{S_OFFB}")

    def loop(tag, qk, Dd):
        A.label(f"L_loop{tag}")
        for t in range(RB):
            A(f"s_waitcnt vmcnt({(D - 1) * 4})")
            ti = t + D
            if ti == RB:
                A(f"s_add_u32 s{S_OFF}, s{S_OFF}, {PP * 16384}")
                A(f"s_cmp_lg_u32 s{S_CNT}, 1")
                A(f"s_cbranch_scc1 L_ns{tag}")
                A(f"s_mov_b64 {sr(SK, 2)}, {sr(N_K, 2)}")
                A(f"s_mov_b64 {sr(SV, 2)}, {sr(N_V, 2)}")
                A(f"s_mov_b32 s{SK+2}, s{N_NUM}")
                A(f"s_mov_b32 s{SV+2}, s{N_NUM}")
                A(f"s_mov_b32 s{S_OFF}, s{N_OFF}")
                A.label(f"L_ns{tag}")
            issue(RING + (ti % RB) * 16, ti & 1, (ti % RB) // 2)
            if t & 1:
                pv(RING + t * 16, Dd)
            else:
                qk(RING + t * 16)
        A(f"s_sub_u32 s{S_CNT}, s{S_CNT}, 1")
        A(f"s_cmp_lg_u32 s{S_CNT}, 0")
        A(f"s_cbranch_scc1 L_loop{tag}")
    loop("A", qk_A, DA)
    A(f"s_cmp_eq_u32 s{S_PH}, 2")
    A("s_cbranch_scc1 L_finA")
    A(f"s_cmp_eq_u32 s{S_PH}, 0")
    A("s_cbranch_scc1 L_toB")
    A(f"s_mov_b32 s{S_CNT}, {(64 - nA1 - nA2) // PP}")
    A(f"s_mov_b32 s{S_PH}, 2")
    set_next(P_AK, P_AV, 0, f"s_mov_b32 s{N_OFF}, 0")
    if ts: stamp(7, T1)
    A("s_barrier")
    A("s_branch L_loopA")
    A.label("L_toB")
    A.c("---- transition A1 -> B")
    if ts: stamp(2, T1)
    A("s_barrier")
    A(f"v_lshrrev_b32 v{T1}, 1, v{VADDR}")
    for h in range(4):
        A(f"ds_read_b128 {vr(QB + 4 * h, 4)}, v{T1} offset:{L_QB + h * 256}")
    A(f"s_mov_b32 s{S_CNT}, {16 // PP}")
    set_next(P_AK, P_AV, 256 << 20, f"s_add_u32 s{N_OFF}, s{S_OFFA}, {nA1 * 16384}")
    A("s_waitcnt lgkmcnt(0)")
    loop("B", qk_B, DB)
    A.c("---- end of B: partials to LDS")
    A(f"v_mov_b32 v{T1}, v{L_B}")
    A(f"v_mov_b32 v{T2}, v{L_B}")
    A("s_nop 1")
    A(f"v_permlane16_swap_b32 v{T1}, v{T2}")
    A(f"v_add_f32 v{T1}, v{T1}, v{T2}")
    A(f"v_mov_b32 v{T2}, v{T1}")
    A("s_nop 1")
    A(f"v_permlane32_swap_b32 v{T1}, v{T2}")
    A(f"v_add_f32 v{T1}, v{T1}, v{T2}")
    A(f"v_bfe_u32 v{SS}, v{V_LANE}, 2, 2")
    A(f"v_lshrrev_b32 v{SS+1}, 4, v{V_LANE}")
    A(f"v_and_b32 v{SS+2}, 3, v{V_LANE}")
    A(f"v_lshlrev_b32 v{SS+3}, 9, v{SS}")
    A(f"v_lshl_add_u32 v{SS+3}, v{SS+1}, 7, v{SS+3}")
    A(f"v_lshl_add_u32 v{SS+3}, v{SS+2}, 2, v{SS+3}")
    A(f"s_lshl_b32 s{S_T}, s3, 11")
    A(f"v_add_u32 v{SS+3}, s{S_T}, v{SS+3}")
    for r in range(4):
        A(f"ds_write_b32 v{SS+3}, v{DB+r} offset:{L_PB + r * 32}")
        A(f"ds_write_b32 v{SS+3}, v{DB+4+r} offset:{L_PB + r * 32 + 16}")
    A(f"v_lshlrev_b32 v{SS}, 5, v{SS}")
    A(f"s_lshl_b32 s{S_T}, s3, 2")
    A(f"v_add_u32 v{SS}, s{S_T}, v{SS}")
    A(f"ds_write_b32 v{SS}, v{M_B} offset:{L_MLB}")
    A(f"ds_write_b32 v{SS}, v{T1} offset:{L_MLB + 16}")
    A(f"s_mov_b32 s{S_CNT}, {nA2 // PP}")
    A(f"s_mov_b32 s{S_PH}, 1")
    set_next(P_AK, P_AV, 256 << 20, f"s_add_u32 s{N_OFF}, s{S_OFFA}, {(nA1 + nA2) * 16384}")
    if ts: stamp(3, T1)
    A("s_waitcnt lgkmcnt(0)")
    A("s_barrier")
    A("s_branch L_loopA")
    A.label("L_finA")
    A.c("---- end of A: merge the 4 banks, partial to LDS")
    A(f"v_max_f32_dpp v{T1}, v{M_A}, v{M_A} row_ror:4 row_mask:0xf bank_mask:0xf")
    A(f"v_bfe_u32 v{SS}, v{V_LANE}, 2, 2")
    A(f"v_lshrrev_b32 v{SS+1}, 4, v{V_LANE}")
    A(f"v_max_f32_dpp v{T1}, v{T1}, v{T1} row_ror:8 row_mask:0xf bank_mask:0xf")
    A(f"v_sub_f32 v{AL}, v{M_A}, v{T1}")
    A(f"v_exp_f32 v{AL}, v{AL}")
    A(f"v_and_b32 v{SS+2}, 3, v{V_LANE}")
    A(f"v_lshlrev_b32 v{SS+3}, 5, v{SS}")
    A(f"v_mul_f32 v{L_A}, v{L_A}, v{AL}")
    for i in range(4):
        A(f"v_pk_mul_f32 {vr(DA + 2 * i, 2)}, {vr(DA + 2 * i, 2)}, {vr(AL, 2)} op_sel_hi:[1,0]")
    A(f"v_add_f32_dpp v{L_A}, v{L_A}, v{L_A} row_ror:4 row_mask:0xf bank_mask:0xf")
    A(f"v_lshl_add_u32 v{SS+3}, v{SS+1}, 7, v{SS+3}")
    A(f"v_lshl_add_u32 v{SS+3}, v{SS+2}, 2, v{SS+3}")
    A(f"v_add_f32_dpp v{L_A}, v{L_A}, v{L_A} row_ror:8 row_mask:0xf bank_mask:0xf")
    bank_reduce([DA, DA + 1, DA + 2, DA + 3], UU, TT, TT + 1)
    bank_reduce([DA + 4, DA + 5, DA + 6, DA + 7], UU + 1, TT + 2, TT + 3)
    A(f"v_mov_b32 v{T2}, v{L_A}")
    A(f"s_lshl_b32 s{S_T}, s3, 9")
    A(f"v_add_u32 v{SS+3}, s{S_T}, v{SS+3}")
    A(f"v_permlane16_swap_b32 v{L_A}, v{T2}")
    A(f"ds_write_b32 v{SS+3}, v{UU} offset:{L_PA}")
    A(f"ds_write_b32 v{SS+3}, v{UU+1} offset:{L_PA + 16}")
    A(f"v_add_f32 v{L_A}, v{L_A}, v{T2}")
    A(f"v_mov_b32 v{T2}, v{L_A}")
    A(f"s_lshl_b32 s{S_T}, s3, 2")
    A(f"v_mov_b32 v{SS}, s{S_T}")
    A(f"v_permlane32_swap_b32 v{L_A}, v{T2}")
    A(f"v_add_f32 v{L_A}, v{L_A}, v{T2}")
    A(f"ds_write_b32 v{SS}, v{T1} offset:{L_MLA}")
    A(f"ds_write_b32 v{SS}, v{L_A} offset:{L_MLA + 16}")
    A("s_waitcnt lgkmcnt(0)")
    if ts: stamp(8, T1)
    A("s_barrier")
    if ts: stamp(1, T1)
    A("s_endpgm")

    A.label("L_helper")
    A.c("---------------- helper ----------------")
    HW = 62
    H_LANE = 2
    H_OQ = 1
    H_OO = 3
    H_OX = 4
    H_MA = 8
    H_XQ = 16
    H_XB = 20
    H_D = 28
    H_B = 36
    H_T = 44
    W0 = 128
    R_X, R_W = 32, 36
    S_SEL0, S_SEL1, S_BASE, S_T2, S_I = 40, 41, 42, 43, 44
    A(f"s_sub_u32 s{HW}, s3, 4")
    A(f"v_lshrrev_b32 v{H_OX}, 2, v{H_LANE}")
    A(f"v_lshlrev_b32 v{H_OX}, 4, v{H_OX}")
    A(f"v_and_b32 v{H_T}, 15, v{H_LANE}")
    A(f"v_lshlrev_b32 v{H_T}, 4, v{H_T}")
    A(f"v_lshrrev_b32 v{H_T+1}, 4, v{H_LANE}")
    A(f"v_lshl_add_u32 v{H_OQ}, v{H_T+1}, 18, v{H_T}")
    A(f"v_lshl_add_u32 v{H_OO}, v{H_T+1}, 15, v{H_T}")
    A(f"s_mov_b32 s{R_X+2}, 8192")
    A(f"s_mov_b32 s{R_X+3}, 0x00020000")
    A(f"s_mov_b32 s{R_W+2}, {0 if now else 4 << 20}")
    A(f"s_mov_b32 s{R_W+3}, 0x00020000")
    A(f"s_lshl_b32 s{S_T2}, s{S_B}, 10")
    A(f"s_lshl_b32 s{S_I}, s{HW}, 8")
    A(f"s_add_u32 s{S_T2}, s{S_T2}, s{S_I}")
    A(f"s_lshl_b32 s{S_BASE}, s{HW}, 20")
    A(f"s_lshl_b32 s{S_I}, s{S_H}, 8")
    A(f"s_add_u32 s{S_BASE}, s{S_BASE}, s{S_I}")
    A("s_waitcnt lgkmcnt(0)")
    A(f"s_mov_b64 {sr(R_X, 2)}, {sr(P_AX, 2)}")
    A(f"s_mov_b64 {sr(R_W, 2)}, {sr(P_AWQ, 2)}")

    def wload(grp, u, stride, voff, flags):
        off = (8 * u + grp) * stride
        rg = W0 + (grp * 4 + u) * 4
        imm = off & 4095 if stride == 1024 else 0
        so = off - imm
        if so:
            A(f"s_add_u32 s{S_I}, s{S_BASE}, {so}")
            sreg = S_I
        else:
            sreg = S_BASE
        A(f"buffer_load_dwordx4 {vr(rg, 4)}, v{voff}, {sr(R_W, 4)}, s{sreg} offen offset:{imm} {flags}".rstrip())
    def wload_grp(grp, stride, voff, flags):
        for u in range(4): wload(grp, u, stride, voff, flags)
    def gemv_grp(grp):
        for k in range(8):
            A(f"v_and_b32 v{H_B+k}, v{H_XB+grp}, v{H_MA+k}")
        A("s_nop 0")
        for u in range(4):
            rg = W0 + (grp * 4 + u) * 4
            A(f"v_mfma_f32_16x16x16_bf16 {vr(H_D, 4)}, {vr(rg, 2)}, {vr(H_B + 2 * u, 2)}, {vr(H_D, 4)}")
            A(f"v_mfma_f32_16x16x16_bf16 {vr(H_D + 4, 4)}, {vr(rg + 2, 2)}, {vr(H_B + 2 * u, 2)}, {vr(H_D + 4, 4)}")
    def xb_from_xq():
        for grp in range(8):
            A(f"v_perm_b32 v{H_XB+grp}, v{H_XQ+grp//2}, v{H_XQ+grp//2}, s{S_SEL1 if grp & 1 else S_SEL0}")
    def zero_D():
        for i in range(8): A(f"v_mov_b32 v{H_D+i}, 0")
    def reduce_D(ulo, uhi):
        A("s_nop 7")
        bank_reduce([H_D, H_D + 1, H_D + 2, H_D + 3], ulo, H_T + 2, H_T + 3)
        bank_reduce([H_D + 4, H_D + 5, H_D + 6, H_D + 7], uhi, H_T + 4, H_T + 5)

    A(f"buffer_load_dwordx4 {vr(H_XQ, 4)}, v{H_OX}, {sr(R_X, 4)}, s{S_T2} offen")
    for grp in range(8): wload_grp(grp, 8192, H_OQ, wflags)
    build_masks(H_MA, H_LANE, H_T)
    A(f"s_mov_b32 s{S_SEL0}, 0x01000100")
    A(f"s_mov_b32 s{S_SEL1}, 0x03020302")
    zero_D()
    H_E = 6
    A(f"v_bfe_u32 v{H_T}, v{H_LANE}, 2, 2")
    A(f"v_lshrrev_b32 v{H_T+1}, 4, v{H_LANE}")
    A(f"v_and_b32 v{H_E}, 3, v{H_LANE}")
    A(f"v_lshl_add_u32 v{H_E}, v{H_T}, 3, v{H_E}")
    A(f"v_lshl_add_u32 v{H_E}, v{H_T+1}, 5, v{H_E}")
    A(f"v_mov_b32 v{H_T}, 0")
    A(f"v_mov_b32 v{H_T+1}, {L_CNT}")
    for k in range(4): A(f"ds_write_b32 v{H_T+1}, v{H_T} offset:{4 * k}")
    A("s_waitcnt vmcnt(32)")
    xb_from_xq()
    for grp in range(8):
        A(f"s_waitcnt vmcnt({(7 - grp) * 4})")
        gemv_grp(grp)
    reduce_D(H_T, H_T + 1)
    A(f"s_lshl_b32 s{S_I}, s{HW}, 9")
    A(f"v_lshlrev_b32 v{H_T+6}, 2, v{H_E}")
    A(f"v_add_u32 v{H_T+6}, s{S_I}, v{H_T+6}")
    A(f"ds_write_b32 v{H_T+6}, v{H_T} offset:{L_QA}")
    A(f"ds_write_b32 v{H_T+6}, v{H_T+1} offset:{L_QA + 16}")
    A("s_waitcnt lgkmcnt(0)")
    A("s_barrier")
    if ts: stamp(0, H_T)
    A.c("---- q_B: partial (rows 128*hw..) of head hq = 4*hkv + s, published to the 4 sibling workgroups")
    S_HQ, S_G, S_BIT, S_BLK = 46, 47, 48, 45
    A(f"s_lshl_b32 s{S_HQ}, s{S_X}, 2")
    A(f"s_add_u32 s{S_HQ}, s{S_HQ}, s{S_S}")
    A(f"s_lshl_b32 s{S_G}, s{S_B}, 3")
    A(f"s_add_u32 s{S_G}, s{S_G}, s{S_X}")
    A(f"s_and_b32 s{S_BIT}, s{S_G}, 3")
    A(f"s_lshl_b32 s{S_BIT}, s{S_BIT}, 3")
    A(f"s_mov_b64 {sr(R_X, 2)}, {sr(P_BX, 2)}")
    A(f"s_mov_b64 {sr(R_W, 2)}, {sr(P_BWQ, 2)}")
    A(f"s_lshl_b32 s{S_BASE}, s{HW}, 20")
    A(f"s_lshl_b32 s{S_I}, s{S_HQ}, 8")
    A(f"s_add_u32 s{S_BASE}, s{S_BASE}, s{S_I}")
    zero_D()
    A(f"buffer_load_dwordx4 {vr(H_XQ, 4)}, v{H_OX}, {sr(R_X, 4)}, s{S_T2} offen")
    for grp in range(qbPD): wload_grp(grp, 8192, H_OQ, wflags)
    A(f"s_waitcnt vmcnt({qbPD * 4})")
    xb_from_xq()
    for grp in range(8):
        A(f"s_waitcnt vmcnt({(min(qbPD, 8 - grp) - 1) * 4})")
        if grp + qbPD < 8: wload_grp(grp + qbPD, 8192, H_OQ, wflags)
        gemv_grp(grp)
    A(f"s_lshl_b32 s{S_I}, s{S_G}, 2")
    A(f"s_add_u32 s{S_I}, s{S_I}, s{S_S}")
    A(f"s_lshl_b32 s{S_I}, s{S_I}, 2")
    A(f"s_add_u32 s{S_I}, s{S_I}, s{HW}")
    A(f"s_lshl_b32 s{S_I}, s{S_I}, 9")
    A(f"s_add_u32 s{S_I}, s{S_I}, {W_QB}")
    A(f"v_lshlrev_b32 v{H_T+6}, 3, v{H_LANE}")
    A(f"v_add_u32 v{H_T+6}, s{S_I}, v{H_T+6}")
    reduce_D(H_T, H_T + 1)
    if not noqx: A(f"global_store_dwordx2 v{H_T+6}, {vr(H_T, 2)}, {sr(P_WS, 2)} sc1")
    H_GA = 7
    def signal_group(cnt_off, inc, tag):
        A("s_waitcnt vmcnt(0)")
        A("s_mov_b64 exec, 1")
        A(f"v_mov_b32 v{H_T+2}, {L_CNT + cnt_off}")
        A(f"v_mov_b32 v{H_T+3}, 1")
        A(f"ds_add_rtn_u32 v{H_T+4}, v{H_T+2}, v{H_T+3}")
        A(f"s_lshl_b32 s{S_T2}, {inc}, s{S_BIT}")
        A(f"v_mov_b32 v{H_T+3}, s{S_T2}")
        A("s_waitcnt lgkmcnt(0)")
        A(f"v_readfirstlane_b32 s{S_T2}, v{H_T+4}")
        A(f"s_cmp_lg_u32 s{S_T2}, 3")
        A(f"s_cbranch_scc1 L_nosig{tag}")
        A(f"global_atomic_add v{H_GA}, v{H_T+3}, {sr(P_DBG, 2)} offset:{D_GRP}")
        A.label(f"L_nosig{tag}")
        A("s_mov_b64 exec, -1")
    def poll_group(shift, tag, first_sleep=True):
        A("s_mov_b64 exec, 1")
        if not first_sleep: A(f"s_branch L_poll1{tag}")
        A.label(f"L_poll{tag}")
        A(f"s_sleep {sleep}")
        A.label(f"L_poll1{tag}")
        A(f"global_load_dword v{H_T+4}, v{H_GA}, {sr(P_DBG, 2)} offset:{D_GRP} sc1")
        A("s_waitcnt vmcnt(0)")
        A(f"v_readfirstlane_b32 s{S_T2}, v{H_T+4}")
        A(f"s_lshr_b32 s{S_T2}, s{S_T2}, s{S_BIT}")
        A(f"s_bfe_u32 s{S_T2}, s{S_T2}, {0x40000 + shift:#x}")
        A(f"s_cmp_lt_u32 s{S_T2}, 4")
        A(f"s_cbranch_scc1 L_poll{tag}")
        A("s_mov_b64 exec, -1")
    A(f"s_andn2_b32 s{S_I}, s{S_G}, 3")
    A(f"v_mov_b32 v{H_GA}, s{S_I}")
    if not noqx: signal_group(0, 1, "q")
    if ts: stamp(14, H_T)

    def wo_preload(ptr, s_head):
        A(f"s_mov_b64 {sr(R_W, 2)}, {sr(ptr, 2)}")
        A(f"s_lshl_b32 s{S_BASE}, s{s_head}, 17")
        A(f"s_lshl_b32 s{S_I}, s{HW}, 8")
        A(f"s_add_u32 s{S_BASE}, s{S_BASE}, s{S_I}")
        for grp in range(8):
            wload_grp(grp, 1024, H_OO, wflags)
            if grp & 1: A("s_waitcnt vmcnt(4)")
    wo_preload(P_BWO, S_HQ)
    A(f"s_cmp_lg_u32 s{HW}, {99 if noqx else 0}")
    A("s_cbranch_scc1 L_qbdone")
    if ts: stamp(15, H_T)
    poll_group(0, "q", first_sleep=False)
    A(f"s_lshl_b32 s{S_I}, s{S_G}, 13")
    A(f"s_add_u32 s{S_I}, s{S_I}, {W_QB}")
    A(f"v_lshlrev_b32 v{H_T+6}, 3, v{H_LANE}")
    A(f"v_add_u32 v{H_T+6}, s{S_I}, v{H_T+6}")
    QP = H_T + 8
    for i in range(16):
        if i == 8: A(f"v_add_u32 v{H_T+6}, 4096, v{H_T+6}")
        A(f"global_load_dwordx2 {vr(QP + 2 * i, 2)}, v{H_T+6}, {sr(P_WS, 2)} offset:{(i & 7) * 512} sc1")
    A(f"v_lshlrev_b32 v{H_T+6}, 1, v{H_E}")
    A("s_waitcnt vmcnt(0)")
    for hh in range(4):
        q = QP + 8 * hh
        A(f"v_pk_add_f32 {vr(q, 2)}, {vr(q, 2)}, {vr(q + 2, 2)}")
        A(f"v_pk_add_f32 {vr(q + 4, 2)}, {vr(q + 4, 2)}, {vr(q + 6, 2)}")
        A(f"v_pk_add_f32 {vr(q, 2)}, {vr(q, 2)}, {vr(q + 4, 2)}")
        A(f"v_cvt_pk_bf16_f32 v{q}, v{q}, v{q+1}")
        A(f"ds_write_b16 v{H_T+6}, v{q} offset:{L_QB + hh * 256}")
        A(f"ds_write_b16_d16_hi v{H_T+6}, v{q} offset:{L_QB + hh * 256 + 8}")
    A.label("L_qbdone")
    A("s_waitcnt lgkmcnt(0)")
    if ts: stamp(1, H_T)
    A("s_barrier")
    A("s_barrier")
    if ts: stamp(2, H_T)

    ML = H_T + 8
    F = H_T + 16
    MM, LL = H_T + 20, H_T + 21
    PO = H_T + 24
    def merge_factors(normalize):
        A(f"v_max3_f32 v{MM}, v{ML}, v{ML+1}, v{ML+2}")
        A(f"v_max_f32 v{MM}, v{MM}, v{ML+3}")
        for i in range(4): A(f"v_sub_f32 v{F+i}, v{ML+i}, v{MM}")
        for i in range(4): A(f"v_exp_f32 v{F+i}, v{F+i}")
        A("s_nop 0")
        A(f"v_mul_f32 v{LL}, v{F}, v{ML+4}")
        for i in range(1, 4): A(f"v_fmac_f32 v{LL}, v{F+i}, v{ML+4+i}")
        if normalize:
            A(f"v_rcp_f32 v{LL}, v{LL}")
            A("s_nop 0")
            for i in range(4): A(f"v_mul_f32 v{F+i}, v{F+i}, v{LL}")
    def merge_vals(n):
        for t in range(n): A(f"v_mul_f32 v{PO+t}, v{F}, v{PO+t}")
        for w in range(1, 4):
            for t in range(n): A(f"v_fmac_f32 v{PO+t}, v{F+w}, v{PO+w*n+t}")

    if nobx:
        A("s_barrier")
        A("s_branch L_bdone")
    A.c("---- B stage 1: merge head hw over the 4 streamer waves, publish")
    A(f"s_lshl_b32 s{S_I}, s{HW}, 9")
    A(f"v_lshlrev_b32 v{H_T}, 3, v{H_LANE}")
    A(f"v_add_u32 v{H_T+1}, s{S_I}, v{H_T}")
    for w in range(4):
        A(f"ds_read_b64 {vr(PO + 2 * w, 2)}, v{H_T+1} offset:{L_PB + w * 2048}")
    A(f"s_lshl_b32 s{S_I}, s{HW}, 5")
    A(f"v_mov_b32 v{H_T+2}, s{S_I}")
    A(f"ds_read_b128 {vr(ML, 4)}, v{H_T+2} offset:{L_MLB}")
    A(f"ds_read_b128 {vr(ML + 4, 4)}, v{H_T+2} offset:{L_MLB + 16}")
    A(f"s_lshl_b32 s{S_I}, s{S_G}, 2")
    A(f"s_add_u32 s{S_I}, s{S_I}, s{S_S}")
    A(f"s_lshl_b32 s{S_I}, s{S_I}, 2")
    A(f"s_add_u32 s{S_I}, s{S_I}, s{HW}")
    A(f"s_lshl_b32 s{S_I}, s{S_I}, 10")
    A(f"v_add_u32 v{H_T}, s{S_I}, v{H_T}")
    A(f"v_mov_b32 v{H_T+1}, s{S_I}")
    A("s_waitcnt lgkmcnt(0)")
    merge_factors(False)
    merge_vals(2)
    A(f"global_store_dwordx2 v{H_T}, {vr(PO, 2)}, {sr(P_WS, 2)} sc1")
    A("s_mov_b64 exec, 1")
    A(f"global_store_dwordx2 v{H_T+1}, {vr(MM, 2)}, {sr(P_WS, 2)} offset:512 sc1")
    signal_group(4, 16, "p")
    A(f"s_cmp_lg_u32 s{HW}, 0")
    A("s_cbranch_scc1 L_polled")
    poll_group(4, "p")
    A.label("L_polled")
    if ts: stamp(8, H_T)
    A("s_barrier")
    if ts: stamp(9, H_T)
    A.c("---- B stage 2: combine the 4 key splits of head hq, project")
    A(f"s_lshl_b32 s{S_I}, s{S_G}, 4")
    A(f"s_add_u32 s{S_I}, s{S_I}, s{S_S}")
    A(f"s_lshl_b32 s{S_I}, s{S_I}, 10")
    A(f"v_lshlrev_b32 v{H_T}, 1, v{H_OX}")
    A(f"v_add_u32 v{H_T}, s{S_I}, v{H_T}")
    A(f"v_mov_b32 v{H_T+1}, s{S_I}")
    for p in range(4):
        if p:
            A(f"v_add_u32 v{H_T}, 4096, v{H_T}")
            A(f"v_add_u32 v{H_T+1}, 4096, v{H_T+1}")
        A(f"global_load_dwordx4 {vr(PO + 8 * p, 4)}, v{H_T}, {sr(P_WS, 2)} sc1")
        A(f"global_load_dwordx4 {vr(PO + 8 * p + 4, 4)}, v{H_T}, {sr(P_WS, 2)} offset:16 sc1")
        A(f"global_load_dwordx2 {vr(H_B + 2 * p, 2)}, v{H_T+1}, {sr(P_WS, 2)} offset:512 sc1")
    A("s_waitcnt vmcnt(0)")
    if ts: stamp(10, H_T)
    for p in range(4):
        A(f"v_mov_b32 v{ML+p}, v{H_B+2*p}")
        A(f"v_mov_b32 v{ML+4+p}, v{H_B+2*p+1}")

    def project_and_store(wbase, s_idx):
        merge_factors(True)
        merge_vals(8)
        zero_D()
        for t in range(8): A(f"v_cvt_pk_bf16_f32 v{H_XB+t}, v{PO+t}, v{PO+t}")
        for grp in range(8): gemv_grp(grp)
        A(f"s_lshl_b32 s{S_I}, s{S_B}, 5")
        A(f"s_add_u32 s{S_I}, s{S_I}, s{s_idx}")
        A(f"s_lshl_b32 s{S_I}, s{S_I}, 2")
        A(f"s_add_u32 s{S_I}, s{S_I}, s{HW}")
        A(f"s_lshl_b32 s{S_I}, s{S_I}, 9")
        A(f"s_add_u32 s{S_I}, s{S_I}, {wbase}")
        A(f"v_lshlrev_b32 v{H_T+6}, 3, v{H_LANE}")
        A(f"v_add_u32 v{H_T+6}, s{S_I}, v{H_T+6}")
        reduce_D(H_T, H_T + 1)
        A(f"global_store_dwordx2 v{H_T+6}, {vr(H_T, 2)}, {sr(P_WS, 2)} sc1")
        A("s_waitcnt vmcnt(0)")
    def final_reduce(wbase, br, s_cb):
        A(f"s_lshl_b32 s{S_I}, s{S_B}, 7")
        A(f"s_add_u32 s{S_I}, s{S_I}, s{s_cb}")
        A(f"s_lshl_b32 s{S_I}, s{S_I}, 9")
        A(f"s_add_u32 s{S_I}, s{S_I}, {wbase}")
        A(f"v_lshlrev_b32 v{H_T+6}, 3, v{H_LANE}")
        A(f"v_add_u32 v{H_T+6}, s{S_I}, v{H_T+6}")
        for i in range(32):
            if i and i % 2 == 0:
                A(f"v_add_u32 v{H_T+6}, 4096, v{H_T+6}")
            A(f"global_load_dwordx2 {vr(W0 + 2 * i, 2)}, v{H_T+6}, {sr(P_WS, 2)} offset:{(i & 1) * 2048} sc1")
        A(f"s_lshl_b32 s{S_I}, s{S_B}, 3")
        A(f"s_add_u32 s{S_I}, s{S_I}, s{s_cb}")
        A(f"s_lshl_b32 s{S_I}, s{S_I}, 8")
        if br: A(f"s_add_u32 s{S_I}, s{S_I}, 1024")
        A(f"v_lshlrev_b32 v{H_T+7}, 1, v{H_E}")
        A(f"v_add_u32 v{H_T+7}, s{S_I}, v{H_T+7}")
        for i in range(1, 32):
            A(f"s_waitcnt vmcnt({31 - i})")
            A(f"v_pk_add_f32 {vr(W0, 2)}, {vr(W0, 2)}, {vr(W0 + 2 * i, 2)}")
        A(f"v_cvt_pk_bf16_f32 v{H_T}, v{W0}, v{W0+1}")
        A(f"global_store_short v{H_T+7}, v{H_T}, {sr(P_OUT, 2)}")
        A(f"global_store_short_d16_hi v{H_T+7}, v{H_T}, {sr(P_OUT, 2)} offset:8")

    project_and_store(W_YB, S_HQ)
    if ts: stamp(11, H_T)
    A("s_mov_b64 exec, 1")
    A(f"v_mov_b32 v{H_T+2}, {L_CNT + 8}")
    A(f"v_mov_b32 v{H_T+3}, 1")
    A(f"ds_add_rtn_u32 v{H_T+4}, v{H_T+2}, v{H_T+3}")
    A(f"s_lshl_b32 s{S_I}, s{S_B}, 2")
    A(f"v_mov_b32 v{H_T+5}, s{S_I}")
    A("s_waitcnt lgkmcnt(0)")
    A(f"v_readfirstlane_b32 s{S_T2}, v{H_T+4}")
    A(f"s_cmp_lg_u32 s{S_T2}, 3")
    A("s_cbranch_scc1 L_bwait")
    A(f"global_atomic_add v{H_T+4}, v{H_T+5}, v{H_T+3}, {sr(P_DBG, 2)} offset:{D_CB} sc0")
    A("s_waitcnt vmcnt(0)")
    A(f"v_add_u32 v{H_T+4}, 1, v{H_T+4}")
    A(f"ds_write_b32 v{H_T+2}, v{H_T+4} offset:4")
    A.label("L_bwait")
    A(f"ds_read_b32 v{H_T+4}, v{H_T+2} offset:4")
    A("s_waitcnt lgkmcnt(0)")
    A(f"v_readfirstlane_b32 s{S_T2}, v{H_T+4}")
    A(f"s_cmp_lg_u32 s{S_T2}, 0")
    A("s_cbranch_scc1 L_bgot")
    A("s_sleep 4")
    A("s_branch L_bwait")
    A.label("L_bgot")
    A("s_mov_b64 exec, -1")
    if ts: stamp(12, H_T)
    A(f"s_cmp_lg_u32 s{S_T2}, 32")
    A("s_cbranch_scc1 L_bdone")
    final_reduce(W_YB, 1, HW)
    A.label("L_bdone")
    A("s_mov_b64 exec, -1")
    if ts: stamp(3, H_T)
    A.c("---- A: preload wo, wait for the streamers")
    wo_preload(P_AWO, S_H)
    A(f"v_lshlrev_b32 v{H_T}, 1, v{H_OX}")
    A(f"v_mov_b32 v{H_T+1}, 0")
    A("s_waitcnt vmcnt(0)")
    if ts: stamp(13, H_T + 2)
    A("s_barrier")
    if noax: A("s_endpgm")
    for w in range(4):
        A(f"ds_read_b128 {vr(PO + 8 * w, 4)}, v{H_T} offset:{L_PA + w * 512}")
        A(f"ds_read_b128 {vr(PO + 8 * w + 4, 4)}, v{H_T} offset:{L_PA + w * 512 + 16}")
    A(f"ds_read_b128 {vr(ML, 4)}, v{H_T+1} offset:{L_MLA}")
    A(f"ds_read_b128 {vr(ML + 4, 4)}, v{H_T+1} offset:{L_MLA + 16}")
    if ts: stamp(4, H_T + 2)
    A("s_waitcnt lgkmcnt(0)")
    project_and_store(W_YA, S_H)
    if ts: stamp(5, H_T + 2)
    A("s_barrier")
    A(f"s_cmp_lg_u32 s{HW}, 0")
    A("s_cbranch_scc1 L_await")
    A("s_mov_b64 exec, 1")
    A(f"s_lshl_b32 s{S_I}, s{S_B}, 2")
    A(f"v_mov_b32 v{H_T+2}, s{S_I}")
    A(f"v_mov_b32 v{H_T+3}, 1")
    A(f"global_atomic_add v{H_T+4}, v{H_T+2}, v{H_T+3}, {sr(P_DBG, 2)} offset:{D_CA} sc0")
    A(f"v_mov_b32 v{H_T+2}, {L_CNT + 16}")
    A("s_waitcnt vmcnt(0)")
    A(f"ds_write_b32 v{H_T+2}, v{H_T+4}")
    A("s_waitcnt lgkmcnt(0)")
    A("s_mov_b64 exec, -1")
    A.label("L_await")
    A("s_barrier")
    A(f"v_mov_b32 v{H_T+2}, {L_CNT + 16}")
    A(f"ds_read_b32 v{H_T+4}, v{H_T+2}")
    A("s_waitcnt lgkmcnt(0)")
    A(f"v_readfirstlane_b32 s{S_T2}, v{H_T+4}")
    if ts: stamp(6, H_T + 2)
    A(f"s_cmp_lg_u32 s{S_T2}, 31")
    A("s_cbranch_scc1 L_end")
    final_reduce(W_YA, 0, HW)
    if ts:
        A("s_waitcnt vmcnt(0)")
        stamp(7, H_T + 2)
    A.label("L_end")
    A("s_endpgm")
    A.L += ['.section .rodata,"a"', ".p2align 6", f".amdhsa_kernel {NAME}",
            "  .amdhsa_next_free_vgpr 256", "  .amdhsa_next_free_sgpr 80", "  .amdhsa_accum_offset 256",
            "  .amdhsa_group_segment_fixed_size 0", "  .amdhsa_kernarg_size 104", "  .amdhsa_user_sgpr_count 2",
            "  .amdhsa_user_sgpr_kernarg_segment_ptr 1", "  .amdhsa_system_sgpr_workgroup_id_x 1",
            "  .amdhsa_float_denorm_mode_32 3", ".end_amdhsa_kernel"]
    return A.text()

if __name__ == "__main__":
    out = sys.argv[1] if len(sys.argv) > 1 else "concat_heads__mha_block_cached__gqa_block_cached__decode.s"
    kw = {}
    for a in sys.argv[2:]:
        k, v = a.split("=", 1)
        try: v = int(v)
        except ValueError: pass
        kw[k] = v
    open(out, "w").write(gen(**kw))
```

```python
import sys, math, struct
NAME = "concat_heads__mha_block_cached__gqa_block_cached__decode_kernel"

HEADER = """\
"""

def f32bits(x):
    return struct.unpack("<I", struct.pack("<f", x))[0]

class Asm:
    def __init__(self):
        self.L = []
    def __call__(self, s):
        self.L.append("  " + s.rstrip())
    def label(self, s):
        self.L.append(s + ":")
    def c(self, s):
        self.L.append("  ; " + s)
    def text(self):
        return "\n".join(self.L) + "\n"

def vr(b, n=1):
    return f"v{b}" if n == 1 else f"v[{b}:{b+n-1}]"
def sr(b, n=1):
    return f"s{b}" if n == 1 else f"s[{b}:{b+n-1}]"

L_QA = 0
L_QB = 2048
L_PA = 3072
L_MLA = 5120
L_MLB = 5184
L_CNT = 5376
L_Q2 = 5632
L_P2 = 16384
L_PB = 8192
LDS_BYTES = 19456
W_PB = 0
W_Y = 1 << 20
W_QB = 2 << 20
W_PC = 3 << 20
W_TS = 4 << 20

def gen(RB=4, D=3, PT=4, PRE=2, nA1=12, nA2=20, kvflags="nt", wflags="nt", qbPD=4, prio=0, ts=0, sleep=48,
        dry=1, now=0, nocomp=0, nox=0, wqaflags=None, spinmax=1 << 16, psl=(48, 1, 16), hprio=3, nobar0=0,
        pace=0, paceN=3, paceS=8, pgrp=8, xr=0, hmap=1, qsleep=1, psleep=3, wot=4, stf="sc1", stf0="sc1", stfy="sc1", fAK=None, fAV=None, fBK=None, fBV=None):
    assert RB % 2 == 0 and D <= RB - 1 and PT % 2 == 0
    PP = RB // 2
    assert (nA1 - PT // 2) % PP == 0 and (64 - nA1 - nA2) % PP == 0 and nA2 % PP == 0 and 16 % PP == 0
    assert (PT + D) * 4 <= 60
    if wqaflags is None: wqaflags = wflags
    A = Asm()
    kvf = kvflags
    A.L.append(HEADER.rstrip("\n"))
    A.L.append(f"; @launch grid=(256,1,1) block=(512,1,1) lds={LDS_BYTES}")
    A.L += ['.amdgcn_target "amdgcn-amd-amdhsa--gfx950"', ".text", f".globl {NAME}", ".p2align 8",
            f".type {NAME},@function", f"{NAME}:"]
    P_AX, P_AK, P_AV, P_AWQ, P_AWO, P_BX, P_BK, P_BV, P_BWQ, P_BWO, P_OUT, P_DBG, P_WS = [4 + 2 * i for i in range(13)]
    A("s_cmp_ge_u32 s2, 256")
    A("s_cbranch_scc1 L_end")
    if xr: A(f"s_xor_b32 s2, s2, {xr}")
    A("s_load_dwordx16 s[4:19], s[0:1], 0")
    A("s_load_dwordx8 s[20:27], s[0:1], 64")
    A("s_load_dwordx2 s[28:29], s[0:1], 96")
    A("v_lshrrev_b32 v1, 6, v0")
    A("v_and_b32 v2, 63, v0")
    A("v_readfirstlane_b32 s3, v1")
    S_X, S_S, S_B, S_H = 30, 31, 60, 61
    A(f"s_and_b32 s{S_X}, s2, 7")
    A(f"s_bfe_u32 s{S_S}, s2, 0x20003")
    A(f"s_lshr_b32 s{S_B}, s2, 5")
    if hmap:
        A(f"s_lshl_b32 s{S_H}, s{S_X}, 2")
        A(f"s_add_u32 s{S_H}, s{S_H}, s{S_S}")
    else:
        A(f"s_and_b32 s{S_H}, s2, 31")
    S_U = 63
    A(f"s_lshl_b32 s{S_U}, s{S_B}, 5")
    A(f"s_add_u32 s{S_U}, s{S_U}, s{S_H}")
    if ts:
        for i in range(16): A(f"s_mov_b32 s{80 + i}, 0")
    A("s_cmp_ge_u32 s3, 4")
    A("s_cbranch_scc1 L_helper")

    def stamp(slot, vtmp=None):
        if not ts: return
        A("s_memrealtime s[72:73]")
        A("s_waitcnt lgkmcnt(0)")
        A(f"s_mov_b32 s{80 + slot}, s72")
    def flush_stamps():
        if not ts: return
        A("s_mov_b64 exec, -1")
        A("v_mov_b32 v9, 0")
        for i in range(16): A(f"v_writelane_b32 v9, s{80 + i}, {i}")
        A("s_lshl_b32 s72, s2, 3")
        A("s_add_u32 s72, s72, s3")
        A("s_lshl_b32 s72, s72, 6")
        A(f"s_add_u32 s72, s72, {W_TS}")
        A("v_lshlrev_b32 v8, 2, v2")
        A("v_add_u32 v8, s72, v8")
        A("s_mov_b64 exec, 0xffff")
        A(f"global_store_dword v8, v9, s[{P_WS}:{P_WS+1}]")

    def build_masks(MA, vj, vt):
        A(f"v_and_b32 v{vt}, 1, v{vj}")
        A(f"v_cmp_eq_u32 vcc, 1, v{vt}")
        A(f"v_mov_b32 v{vt}, 0xffff")
        A(f"v_mov_b32 v{vt+1}, 0xffff0000")
        A(f"v_cndmask_b32 v{vt}, v{vt}, v{vt+1}, vcc")
        A(f"v_bfe_u32 v{vt+1}, v{vj}, 1, 3")
        for k in range(8):
            A(f"v_cmp_eq_u32 vcc, {k}, v{vt+1}")
            A("s_nop 1")
            A(f"v_cndmask_b32 v{MA+k}, 0, v{vt}, vcc")

    def bank_reduce(src, dst, Ta, Tb):
        A(f"v_add_f32_dpp v{Ta}, v{src[0]}, v{src[0]} row_ror:8 row_mask:0xf bank_mask:0x3")
        A(f"v_add_f32_dpp v{Tb}, v{src[1]}, v{src[1]} row_ror:8 row_mask:0xf bank_mask:0x3")
        A(f"v_add_f32_dpp v{Ta}, v{src[2]}, v{src[2]} row_ror:8 row_mask:0xf bank_mask:0xc")
        A(f"v_add_f32_dpp v{Tb}, v{src[3]}, v{src[3]} row_ror:8 row_mask:0xf bank_mask:0xc")
        A("s_nop 0")
        A(f"v_add_f32_dpp v{dst}, v{Ta}, v{Ta} row_shl:4 row_mask:0xf bank_mask:0x5")
        A(f"v_add_f32_dpp v{dst}, v{Tb}, v{Tb} row_shr:4 row_mask:0xf bank_mask:0xa")

    V_OFF, V_LANE = 1, 2
    QA, QB, MA, MB = 4, 8, 24, 32
    M_A, L_A, M_B, L_B = 34, 35, 36, 37
    DA, DB, SS, TT, UU, BOP = 40, 48, 56, 72, 80, 84
    T1, T2, MN, AL, PPv, VADDR, VPA, VML = 100, 101, 102, 104, 106, 110, 111, 103
    RING = 112
    TMP = RING + RB * 16
    assert TMP + PT * 16 <= 256, (TMP, PT)
    SK, SV = 32, 36
    S_OFF, S_CNT, S_T, S_PH = 40, 41, 42, 43
    N_K, N_V, N_NUM, N_OFF = 44, 46, 48, 49
    S_C, S_OFFB = 50, 52

    def breg(t):
        return TMP + t * 16 if t < PT else RING + ((t - PT) % RB) * 16
    def issue(base, isV, pair, inB=False):
        s = SV if isV else SK
        kvflags = {(0, 0): fAK, (0, 1): fAV, (1, 0): fBK, (1, 1): fBV}[(int(inB), int(isV))]
        if kvflags is None: kvflags = kvf
        if pair == 0:
            so = f"s{S_OFF}"
        else:
            A(f"s_add_u32 s{S_T}, s{S_OFF}, {pair * 16384}")
            so = f"s{S_T}"
        for j in range(4):
            A(f"buffer_load_dwordx4 {vr(base + 4 * j, 4)}, v{V_OFF}, {sr(s, 4)}, {so} offen offset:{j * 1024} {kvflags}")

    A.c("---------------- streamer ----------------")
    A(f"v_lshlrev_b32 v{V_OFF}, 4, v0")
    A(f"s_mul_i32 s{S_T}, s3, 3072")
    A(f"v_add_u32 v{V_OFF}, s{S_T}, v{V_OFF}")
    A(f"s_lshl_b32 s{S_OFF}, s{S_U}, 20")
    A(f"s_mov_b32 s{SK+2}, {256 << 20}")
    A(f"s_mov_b32 s{SK+3}, 0x00020000")
    A(f"s_mov_b32 s{SV+2}, {256 << 20}")
    A(f"s_mov_b32 s{SV+3}, 0x00020000")
    A("s_waitcnt lgkmcnt(0)")
    A(f"s_mov_b64 {sr(SK, 2)}, {sr(P_AK, 2)}")
    A(f"s_mov_b64 {sr(SV, 2)}, {sr(P_AV, 2)}")
    stamp(6)
    for t in range(PT + D):
        if t == PRE and not nobar0: A("s_barrier")
        issue(breg(t), t & 1, t // 2)
    if prio: A(f"s_setprio {prio}")
    S_PC, S_PA, S_MY, S_PN = 54, 56, 57, 58
    if pace:
        lg = {8: 3, 16: 4, 32: 5, 64: 6}[pgrp]
        A(f"s_lshr_b32 s{S_T}, s2, {lg}")
        A(f"s_lshl_b32 s{S_T}, s{S_T}, 8")
        A(f"s_add_u32 s{S_T}, s{S_T}, {W_PC}")
        A(f"s_add_u32 s{S_PC}, s{P_WS}, s{S_T}")
        A(f"s_addc_u32 s{S_PC+1}, s{P_WS+1}, 0")
        A(f"s_mov_b32 s{S_MY}, 0")
        A(f"s_and_b32 s{S_T}, s2, {pgrp - 1}")
        A(f"s_or_b32 s{S_T}, s{S_T}, s3")
        A(f"s_cmp_lg_u32 s{S_T}, 0")
        A("s_cbranch_scc1 L_nozero")
        A(f"s_mov_b32 s{S_PA}, 0")
        A(f"s_atomic_swap s{S_PA}, {sr(S_PC, 2)}, 0x0")
        A.label("L_nozero")
    stamp(4)
    A(f"s_add_u32 s{S_OFF}, s{S_OFF}, {PT // 2 * 16384}")
    A(f"s_lshl_b32 s{S_OFFB}, s{S_B}, 3")
    A(f"s_add_u32 s{S_OFFB}, s{S_OFFB}, s{S_X}")
    A(f"s_lshl_b32 s{S_OFFB}, s{S_OFFB}, 2")
    A(f"s_add_u32 s{S_OFFB}, s{S_OFFB}, s{S_S}")
    A(f"s_lshl_b32 s{S_OFFB}, s{S_OFFB}, 18")
    A(f"s_mov_b32 s{S_C}, {f32bits(math.log2(math.e) / math.sqrt(128.0)):#x}")
    build_masks(MA, V_LANE, T1)
    A(f"v_or_b32 v{MB}, v{MA}, v{MA+2}")
    A(f"v_or3_b32 v{MB}, v{MB}, v{MA+4}, v{MA+6}")
    A(f"v_or_b32 v{MB+1}, v{MA+1}, v{MA+3}")
    A(f"v_or3_b32 v{MB+1}, v{MB+1}, v{MA+5}, v{MA+7}")
    for r in (M_A, M_B):
        A(f"v_mov_b32 v{r}, 0xff800000")
    for r in [L_A, L_B] + list(range(DA, DA + 8)) + list(range(DB, DB + 8)):
        A(f"v_mov_b32 v{r}, 0")
    A(f"v_and_b32 v{VADDR}, 15, v{V_LANE}")
    A(f"v_lshlrev_b32 v{VADDR}, 5, v{VADDR}")
    A(f"v_bfe_u32 v{SS}, v{V_LANE}, 2, 2")
    A(f"v_lshrrev_b32 v{SS+1}, 4, v{V_LANE}")
    A(f"v_and_b32 v{SS+2}, 3, v{V_LANE}")
    A(f"v_lshlrev_b32 v{VPA}, 5, v{SS}")
    A(f"v_lshl_add_u32 v{VPA}, v{SS+1}, 7, v{VPA}")
    A(f"v_lshl_add_u32 v{VPA}, v{SS+2}, 2, v{VPA}")
    A(f"s_lshl_b32 s{S_T}, s3, 9")
    A(f"v_add_u32 v{VPA}, s{S_T}, v{VPA}")
    A(f"s_lshl_b32 s{S_T}, s3, 2")
    A(f"v_mov_b32 v{VML}, s{S_T}")
    A("s_barrier")
    for w in range(4):
        b0 = (SS if w < 2 else TT) + 8 * (w & 1)
        A(f"ds_read_b128 {vr(b0, 4)}, v{VADDR} offset:{L_QA + w * 512}")
        A(f"ds_read_b128 {vr(b0 + 4, 4)}, v{VADDR} offset:{L_QA + w * 512 + 16}")
    A("s_waitcnt lgkmcnt(0)")
    for i in range(0, 8, 2):
        A(f"v_pk_add_f32 {vr(SS + i, 2)}, {vr(SS + i, 2)}, {vr(SS + 8 + i, 2)}")
        A(f"v_pk_add_f32 {vr(TT + i, 2)}, {vr(TT + i, 2)}, {vr(TT + 8 + i, 2)}")
    for i in range(0, 8, 2):
        A(f"v_pk_add_f32 {vr(SS + i, 2)}, {vr(SS + i, 2)}, {vr(TT + i, 2)}")
    for i in range(4):
        A(f"v_cvt_pk_bf16_f32 v{QA+i}, v{SS+2*i}, v{SS+2*i+1}")
    nst = 0
    stamp(0)
    if ts: A("s_getreg_b32 s85, hwreg(HW_REG_XCC_ID)")

    def softmax_tail(S, M, Lr, Dd):
        A("s_nop 1")
        A(f"v_permlane16_swap_b32 v{T1}, v{T2}")
        A(f"v_max_f32 v{T1}, v{T1}, v{T2}")
        A(f"v_mov_b32 v{T2}, v{T1}")
        A("s_nop 1")
        A(f"v_permlane32_swap_b32 v{T1}, v{T2}")
        A(f"v_max3_f32 v{MN}, v{T1}, v{T2}, v{M}")
        A(f"v_sub_f32 v{AL}, v{M}, v{MN}")
        for i, s in enumerate(S):
            A(f"v_sub_f32 v{PPv+i}, v{s}, v{MN}")
        A(f"v_exp_f32 v{AL}, v{AL}")
        for i in range(len(S)):
            A(f"v_exp_f32 v{PPv+i}, v{PPv+i}")
        A(f"v_mov_b32 v{M}, v{MN}")
        A(f"v_fma_f32 v{Lr}, v{Lr}, v{AL}, v{PPv}")
        for i in range(4):
            A(f"v_pk_mul_f32 {vr(Dd + 2 * i, 2)}, {vr(Dd + 2 * i, 2)}, {vr(AL, 2)} op_sel_hi:[1,0]")
        for i in range(1, len(S)):
            A(f"v_add_f32 v{Lr}, v{Lr}, v{PPv+i}")
    def qk_A(kb):
        if nocomp: return
        for i in range(4):
            for u in range(4):
                if i == 0: A(f"v_dot2_f32_bf16 v{SS+u}, v{kb+4*u}, v{QA}, 0")
                else: A(f"v_dot2c_f32_bf16 v{SS+u}, v{kb+4*u+i}, v{QA+i}")
        bank_reduce([SS, SS + 1, SS + 2, SS + 3], UU, TT, TT + 1)
        A("s_nop 1")
        A(f"v_add_f32_dpp v{UU}, v{UU}, v{UU} quad_perm:[1,0,3,2] row_mask:0xf bank_mask:0xf")
        A("s_nop 1")
        A(f"v_add_f32_dpp v{UU}, v{UU}, v{UU} quad_perm:[2,3,0,1] row_mask:0xf bank_mask:0xf")
        A(f"v_mul_f32 v{SS}, s{S_C}, v{UU}")
        A(f"v_mul_f32 v{T1}, s{S_C}, v{UU}")
        A(f"v_mul_f32 v{T2}, s{S_C}, v{UU}")
        softmax_tail([SS], M_A, L_A, DA)
        A(f"v_cvt_pk_bf16_f32 v{T1}, v{PPv}, v{PPv}")
        for k in range(8):
            A(f"v_and_b32 v{BOP+k}, v{T1}, v{MA+k}")
    def pv(vb, Dd):
        if nocomp: return
        for u in range(4):
            A(f"v_mfma_f32_16x16x16_bf16 {vr(Dd, 4)}, {vr(vb + 4 * u, 2)}, {vr(BOP + 2 * u, 2)}, {vr(Dd, 4)}")
            A(f"v_mfma_f32_16x16x16_bf16 {vr(Dd + 4, 4)}, {vr(vb + 4 * u + 2, 2)}, {vr(BOP + 2 * u, 2)}, {vr(Dd + 4, 4)}")
    def qk_B(kb):
        if nocomp: return
        for u in range(4):
            for i in range(4):
                for h in range(4):
                    if i == 0: A(f"v_dot2_f32_bf16 v{SS+4*u+h}, v{kb+4*u}, v{QB+4*h}, 0")
                    else: A(f"v_dot2c_f32_bf16 v{SS+4*u+h}, v{kb+4*u+i}, v{QB+4*h+i}")
        for u in range(4):
            s = SS + 4 * u
            A(f"v_add_f32_dpp v{TT+2*u}, v{s}, v{s} row_ror:8 row_mask:0xf bank_mask:0x3")
            A(f"v_add_f32_dpp v{TT+2*u+1}, v{s+1}, v{s+1} row_ror:8 row_mask:0xf bank_mask:0x3")
            A(f"v_add_f32_dpp v{TT+2*u}, v{s+2}, v{s+2} row_ror:8 row_mask:0xf bank_mask:0xc")
            A(f"v_add_f32_dpp v{TT+2*u+1}, v{s+3}, v{s+3} row_ror:8 row_mask:0xf bank_mask:0xc")
        for u in range(4):
            A(f"v_add_f32_dpp v{UU+u}, v{TT+2*u}, v{TT+2*u} row_shl:4 row_mask:0xf bank_mask:0x5")
        for u in range(4):
            A(f"v_add_f32_dpp v{UU+u}, v{TT+2*u+1}, v{TT+2*u+1} row_shr:4 row_mask:0xf bank_mask:0xa")
        for u in range(4):
            A(f"v_add_f32_dpp v{UU+u}, v{UU+u}, v{UU+u} quad_perm:[1,0,3,2] row_mask:0xf bank_mask:0xf")
        for u in range(4):
            A(f"v_add_f32_dpp v{UU+u}, v{UU+u}, v{UU+u} quad_perm:[2,3,0,1] row_mask:0xf bank_mask:0xf")
        for u in range(4):
            A(f"v_mul_f32 v{SS+u}, s{S_C}, v{UU+u}")
        A(f"v_max3_f32 v{T1}, v{SS}, v{SS+1}, v{SS+2}")
        A(f"v_max_f32 v{T1}, v{T1}, v{SS+3}")
        A(f"v_mov_b32 v{T2}, v{T1}")
        softmax_tail([SS, SS + 1, SS + 2, SS + 3], M_B, L_B, DB)
        for u in range(4):
            A(f"v_cvt_pk_bf16_f32 v{SS+u}, v{PPv+u}, v{PPv+u}")
        for u in range(4):
            A(f"v_and_b32 v{BOP+2*u}, v{SS+u}, v{MB}")
            A(f"v_and_b32 v{BOP+2*u+1}, v{SS+u}, v{MB+1}")

    for t in range(PT):
        A(f"s_waitcnt vmcnt({(PT + D - 1 - t) * 4 + nst})")
        if t & 1:
            A("s_nop 0")
            pv(breg(t), DA)
        else:
            qk_A(breg(t))
    def set_next(kp, vp, num, off_lines):
        A(f"s_mov_b64 {sr(N_K, 2)}, {sr(kp, 2)}")
        A(f"s_mov_b64 {sr(N_V, 2)}, {sr(vp, 2)}")
        A(f"s_mov_b32 s{N_NUM}, {num}")
        for l in off_lines: A(l)
    A(f"s_mov_b32 s{S_CNT}, {(nA1 - PT // 2) // PP}")
    A(f"s_mov_b32 s{S_PH}, 0")
    set_next(P_BK, P_BV, 64 << 20, [f"s_mov_b32 s{N_OFF}, s{S_OFFB}"])

    def loop(tag, qk, Dd):
        A.label(f"L_loop{tag}")
        for t in range(RB):
            A(f"s_waitcnt vmcnt({(D - 1) * 4})")
            ti = t + D
            if ti == RB:
                A(f"s_add_u32 s{S_OFF}, s{S_OFF}, {PP * 16384}")
                A(f"s_cmp_lg_u32 s{S_CNT}, 1")
                A(f"s_cbranch_scc1 L_ns{tag}")
                A(f"s_mov_b64 {sr(SK, 2)}, {sr(N_K, 2)}")
                A(f"s_mov_b64 {sr(SV, 2)}, {sr(N_V, 2)}")
                A(f"s_mov_b32 s{SK+2}, s{N_NUM}")
                A(f"s_mov_b32 s{SV+2}, s{N_NUM}")
                A(f"s_mov_b32 s{S_OFF}, s{N_OFF}")
                A.label(f"L_ns{tag}")
            if pace and t == RB - 1:
                A("s_waitcnt lgkmcnt(0)")
                A(f"s_sub_u32 s{S_PA}, s{S_MY}, s{S_PA}")
                A(f"s_cmp_le_i32 s{S_PA}, {pace}")
                A(f"s_cbranch_scc1 L_go{tag}")
                A(f"s_mov_b32 s{S_PN}, {paceN}")
                A.label(f"L_hold{tag}")
                A(f"s_sleep {paceS}")
                A(f"s_mov_b32 s{S_PA}, 0")
                A(f"s_atomic_add s{S_PA}, {sr(S_PC, 2)}, 0x0 glc")
                A(f"s_sub_u32 s{S_PN}, s{S_PN}, 1")
                A("s_waitcnt lgkmcnt(0)")
                A(f"s_cbranch_scc1 L_go{tag}")
                A(f"s_sub_u32 s{S_PA}, s{S_MY}, s{S_PA}")
                A(f"s_cmp_gt_i32 s{S_PA}, {pace}")
                A(f"s_cbranch_scc1 L_hold{tag}")
                A.label(f"L_go{tag}")
            issue(RING + (ti % RB) * 16, ti & 1, (ti % RB) // 2, tag == "B")
            if pace and t == 0:
                A(f"s_mov_b32 s{S_PA}, 1")
                A(f"s_atomic_add s{S_PA}, {sr(S_PC, 2)}, 0x0 glc")
                A(f"s_add_u32 s{S_MY}, s{S_MY}, {4 * pgrp}")
            if t & 1: pv(RING + t * 16, Dd)
            else: qk(RING + t * 16)
        A(f"s_sub_u32 s{S_CNT}, s{S_CNT}, 1")
        A(f"s_cmp_lg_u32 s{S_CNT}, 0")
        A(f"s_cbranch_scc1 L_loop{tag}")
    loop("A", qk_A, DA)
    A(f"s_cmp_lg_u32 s{S_PH}, 2")
    A("s_cbranch_scc1 L_notfin")
    A.label("L_finA")
    A.c("---- end of A: merge the 4 banks, partial to LDS")
    A(f"v_max_f32_dpp v{T1}, v{M_A}, v{M_A} row_ror:4 row_mask:0xf bank_mask:0xf")
    A("s_nop 1")
    A(f"v_max_f32_dpp v{T1}, v{T1}, v{T1} row_ror:8 row_mask:0xf bank_mask:0xf")
    A(f"v_sub_f32 v{AL}, v{M_A}, v{T1}")
    A(f"v_exp_f32 v{AL}, v{AL}")
    A(f"ds_write_b32 v{VML}, v{T1} offset:{L_MLA}")
    A(f"v_mul_f32 v{L_A}, v{L_A}, v{AL}")
    for i in range(4):
        A(f"v_pk_mul_f32 {vr(DA + 2 * i, 2)}, {vr(DA + 2 * i, 2)}, {vr(AL, 2)} op_sel_hi:[1,0]")
    A(f"v_add_f32_dpp v{L_A}, v{L_A}, v{L_A} row_ror:4 row_mask:0xf bank_mask:0xf")
    bank_reduce([DA, DA + 1, DA + 2, DA + 3], UU, TT, TT + 1)
    A(f"v_add_f32_dpp v{L_A}, v{L_A}, v{L_A} row_ror:8 row_mask:0xf bank_mask:0xf")
    A(f"ds_write_b32 v{VPA}, v{UU} offset:{L_PA}")
    A(f"v_mov_b32 v{T2}, v{L_A}")
    bank_reduce([DA + 4, DA + 5, DA + 6, DA + 7], UU + 1, TT + 2, TT + 3)
    A(f"v_permlane16_swap_b32 v{L_A}, v{T2}")
    A(f"ds_write_b32 v{VPA}, v{UU+1} offset:{L_PA + 16}")
    A(f"v_add_f32 v{L_A}, v{L_A}, v{T2}")
    A(f"v_mov_b32 v{T2}, v{L_A}")
    A("s_nop 1")
    A(f"v_permlane32_swap_b32 v{L_A}, v{T2}")
    A(f"v_add_f32 v{L_A}, v{L_A}, v{T2}")
    A(f"ds_write_b32 v{VML}, v{L_A} offset:{L_MLA + 16}")
    A("s_waitcnt lgkmcnt(0)")
    if dry: A("s_cbranch_execz L_dryret")
    stamp(8, T1)
    A("s_barrier")
    flush_stamps()
    A("s_endpgm")
    A.label("L_notfin")
    A(f"s_cmp_eq_u32 s{S_PH}, 0")
    A("s_cbranch_scc1 L_toB")
    A(f"s_mov_b32 s{S_CNT}, {(64 - nA1 - nA2) // PP}")
    A(f"s_mov_b32 s{S_PH}, 2")
    set_next(P_AK, P_AV, 0, [f"s_mov_b32 s{N_OFF}, 0"])
    stamp(7, T1)
    A("s_barrier")
    A("s_branch L_loopA")
    A.label("L_toB")
    A.c("---- transition A1 -> B")
    stamp(2, T1)
    A("s_barrier")
    A(f"v_lshrrev_b32 v{T1}, 1, v{VADDR}")
    for h in range(4):
        A(f"ds_read_b128 {vr(QB + 4 * h, 4)}, v{T1} offset:{L_QB + h * 256}")
    A(f"s_mov_b32 s{S_CNT}, {16 // PP}")
    set_next(P_AK, P_AV, 256 << 20, [f"s_lshl_b32 s{N_OFF}, s{S_U}, 20", f"s_add_u32 s{N_OFF}, s{N_OFF}, {nA1 * 16384}"])
    A("s_waitcnt lgkmcnt(0)")
    loop("B", qk_B, DB)
    A.c("---- end of B: partials to LDS")
    A(f"v_mov_b32 v{T1}, v{L_B}")
    A(f"v_mov_b32 v{T2}, v{L_B}")
    A("s_nop 1")
    A(f"v_permlane16_swap_b32 v{T1}, v{T2}")
    A(f"v_add_f32 v{T1}, v{T1}, v{T2}")
    A(f"v_mov_b32 v{T2}, v{T1}")
    A("s_nop 1")
    A(f"v_permlane32_swap_b32 v{T1}, v{T2}")
    A(f"v_add_f32 v{T1}, v{T1}, v{T2}")
    A(f"v_bfe_u32 v{SS}, v{V_LANE}, 2, 2")
    A(f"v_lshrrev_b32 v{SS+1}, 4, v{V_LANE}")
    A(f"v_and_b32 v{SS+2}, 3, v{V_LANE}")
    A(f"v_lshlrev_b32 v{SS+3}, 9, v{SS}")
    A(f"v_lshl_add_u32 v{SS+3}, v{SS+1}, 7, v{SS+3}")
    A(f"v_lshl_add_u32 v{SS+3}, v{SS+2}, 2, v{SS+3}")
    A(f"s_lshl_b32 s{S_T}, s3, 11")
    A(f"v_add_u32 v{SS+3}, s{S_T}, v{SS+3}")
    for r in range(4):
        A(f"ds_write_b32 v{SS+3}, v{DB+r} offset:{L_PB + r * 32}")
        A(f"ds_write_b32 v{SS+3}, v{DB+4+r} offset:{L_PB + r * 32 + 16}")
    A(f"v_lshl_add_u32 v{SS}, v{SS}, 5, v{VML}")
    A(f"ds_write_b32 v{SS}, v{M_B} offset:{L_MLB}")
    A(f"ds_write_b32 v{SS}, v{T1} offset:{L_MLB + 16}")
    A(f"s_mov_b32 s{S_CNT}, {nA2 // PP}")
    A(f"s_mov_b32 s{S_PH}, 1")
    set_next(P_AK, P_AV, 256 << 20, [f"s_lshl_b32 s{N_OFF}, s{S_U}, 20", f"s_add_u32 s{N_OFF}, s{N_OFF}, {(nA1 + nA2) * 16384}"])
    stamp(3, T1)
    A("s_waitcnt lgkmcnt(0)")
    A("s_barrier")
    A("s_branch L_loopA")

    A.label("L_helper")
    A.c("---------------- helper ----------------")
    HW = 62
    H_OQ, H_LANE, H_OO, H_OX, H_E, H_L16 = 1, 2, 3, 4, 6, 7
    H_MA, H_XQ, H_XB, H_D, H_B, H_T = 8, 16, 20, 28, 36, 44
    ML, F = H_T + 8, H_T + 16
    MM, LL = H_T + 20, H_T + 21
    PO = H_T + 24
    VP, VM, VY, VNAN = 100, 102, 103, 104
    RA, RO = 106, 110
    YS, SQ = 112, 116
    W0 = 128
    R_X, R_W = 32, 36
    S_SEL0, S_SEL1, S_BASE, S_T2, S_I, S_PH2, S_XO, S_G, S_SL = 40, 41, 53, 43, 44, 45, 46, 47, 49
    S_BA, S_PV = 54, 64
    if hprio: A(f"s_setprio {hprio}")
    A(f"s_sub_u32 s{HW}, s3, 4")
    A(f"v_lshlrev_b32 v{H_L16}, 4, v{H_LANE}")
    A(f"s_lshl_b32 s{S_SL}, s{S_U}, 2")
    A(f"s_add_u32 s{S_SL}, s{S_SL}, s{HW}")
    A(f"s_lshl_b32 s{S_SL}, s{S_SL}, 10")
    A(f"v_add_u32 v{H_T+8}, s{S_SL}, v{H_L16}")
    A(f"v_add_u32 v{VY}, {W_Y}, v{H_T+8}")
    A(f"s_lshr_b32 s{S_I}, s{S_SL}, 4")
    A(f"s_add_u32 s{S_I}, s{S_I}, {W_QB - 960}")
    A(f"v_add_u32 v{H_T+9}, s{S_I}, v{H_L16}")
    A(f"v_cmp_gt_u32 vcc, 60, v{H_LANE}")
    for i in range(4): A(f"v_mov_b32 v{SQ+i}, -1")
    A(f"v_cndmask_b32 v{H_T+9}, v{H_T+9}, v{H_T+8}, vcc")
    A(f"v_lshrrev_b32 v{H_OX}, 2, v{H_LANE}")
    A(f"v_lshlrev_b32 v{H_OX}, 4, v{H_OX}")
    A(f"v_and_b32 v{H_T}, 15, v{H_LANE}")
    A(f"v_lshlrev_b32 v{H_T}, 4, v{H_T}")
    A(f"v_lshrrev_b32 v{H_T+1}, 4, v{H_LANE}")
    A(f"v_lshl_add_u32 v{H_OQ}, v{H_T+1}, 18, v{H_T}")
    A(f"v_lshl_add_u32 v{H_OO}, v{H_T+1}, 15, v{H_T}")
    A(f"s_mov_b32 s{R_X+2}, 8192")
    A(f"s_mov_b32 s{R_X+3}, 0x00020000")
    A(f"s_mov_b32 s{R_W+2}, {0 if now else 4 << 20}")
    A(f"s_mov_b32 s{R_W+3}, 0x00020000")
    A(f"s_lshl_b32 s{S_XO}, s{S_B}, 10")
    A(f"s_lshl_b32 s{S_I}, s{HW}, 8")
    A(f"s_add_u32 s{S_XO}, s{S_XO}, s{S_I}")
    A(f"s_lshl_b32 s{S_BASE}, s{HW}, 20")
    A(f"s_lshl_b32 s{S_I}, s{S_H}, 8")
    A(f"s_add_u32 s{S_BASE}, s{S_BASE}, s{S_I}")
    A("s_waitcnt lgkmcnt(0)")
    A(f"s_mov_b64 {sr(R_X, 2)}, {sr(P_AX, 2)}")
    A(f"s_mov_b64 {sr(R_W, 2)}, {sr(P_AWQ, 2)}")

    def wload_grp(grp, stride, voff, flags):
        for u in range(4):
            off = (8 * u + grp) * stride
            rg = W0 + (grp * 4 + u) * 4
            imm = off & 4095 if stride == 1024 else 0
            so = off - imm
            if so:
                A(f"s_add_u32 s{S_I}, s{S_BASE}, {so}")
            A(f"buffer_load_dwordx4 {vr(rg, 4)}, v{voff}, {sr(R_W, 4)}, s{S_I if so else S_BASE} offen offset:{imm} {flags}")
    def gemv_grp(grp):
        for k in range(8):
            A(f"v_and_b32 v{H_B+k}, v{H_XB+grp}, v{H_MA+k}")
        for u in range(4):
            rg = W0 + (grp * 4 + u) * 4
            A(f"v_mfma_f32_16x16x16_bf16 {vr(H_D, 4)}, {vr(rg, 2)}, {vr(H_B + 2 * u, 2)}, {vr(H_D, 4)}")
            A(f"v_mfma_f32_16x16x16_bf16 {vr(H_D + 4, 4)}, {vr(rg + 2, 2)}, {vr(H_B + 2 * u, 2)}, {vr(H_D + 4, 4)}")
    def xb_from_xq():
        for grp in range(8):
            A(f"v_perm_b32 v{H_XB+grp}, v{H_XQ+grp//2}, v{H_XQ+grp//2}, s{S_SEL1 if grp & 1 else S_SEL0}")
    def zero_D():
        for i in range(8): A(f"v_mov_b32 v{H_D+i}, 0")
    def reduce_D(ulo, uhi):
        A("s_nop 7")
        bank_reduce([H_D, H_D + 1, H_D + 2, H_D + 3], ulo, H_T + 2, H_T + 3)
        bank_reduce([H_D + 4, H_D + 5, H_D + 6, H_D + 7], uhi, H_T + 4, H_T + 5)
    def sanitize(regs, nanreg):
        for i, r in enumerate(regs):
            A(f"v_cmp_eq_u32 {sr(S_PV + 2 * i, 2)}, -1, v{r}")
        if len(regs) < 3: A("s_nop 1")
        for i, r in enumerate(regs):
            A(f"v_cndmask_b32 v{r}, v{r}, v{nanreg}, {sr(S_PV + 2 * i, 2)}")
    def gather(tag, loads, slp_many, slp_few, thr):
        A(f"s_mov_b64 s[56:57], exec")
        A(f"s_mov_b32 s{S_I}, {spinmax}")
        A.label(f"L_g{tag}")
        for dst, va, off in loads:
            A(f"global_load_dwordx4 {vr(dst, 4)}, v{va}, {sr(P_WS, 2)} offset:{off} sc1")
        A(f"s_sub_u32 s{S_I}, s{S_I}, 1")
        A(f"s_cbranch_scc1 L_gx{tag}")
        for n, (dst, va, off) in enumerate(loads):
            A(f"s_waitcnt vmcnt({len(loads) - 1 - n})")
            if n == 0:
                A(f"v_max3_u32 v{H_T}, v{dst}, v{dst+1}, v{dst+2}")
                A(f"v_max_u32 v{H_T}, v{H_T}, v{dst+3}")
            else:
                A(f"v_max3_u32 v{H_T}, v{H_T}, v{dst}, v{dst+1}")
                A(f"v_max3_u32 v{H_T}, v{H_T}, v{dst+2}, v{dst+3}")
        A(f"v_cmp_eq_u32 vcc, -1, v{H_T}")
        A("s_nop 0")
        A(f"s_cbranch_vccz L_gx{tag}")
        A("s_mov_b64 exec, vcc")
        if slp_many != slp_few:
            A(f"s_bcnt1_i32_b64 s{S_T2}, vcc")
            A(f"s_cmp_gt_u32 s{S_T2}, {thr}")
            A(f"s_cbranch_scc1 L_gl{tag}")
            A(f"s_sleep {slp_few}")
            A(f"s_branch L_g{tag}")
            A.label(f"L_gl{tag}")
        A(f"s_sleep {slp_many}")
        A(f"s_branch L_g{tag}")
        A.label(f"L_gx{tag}")
        A("s_mov_b64 exec, s[56:57]")
        A("s_waitcnt vmcnt(0)")
    def wo_preload(ptr):
        A(f"s_mov_b64 {sr(R_W, 2)}, {sr(ptr, 2)}")
        A(f"s_lshl_b32 s{S_BASE}, s{S_H}, 17")
        A(f"s_lshl_b32 s{S_I}, s{HW}, 8")
        A(f"s_add_u32 s{S_BASE}, s{S_BASE}, s{S_I}")
        for grp in range(8):
            wload_grp(grp, 1024, H_OO, wflags)
            if grp & 1: A(f"s_waitcnt vmcnt({wot})")
    def merge_factors(normalize):
        A(f"v_max3_f32 v{MM}, v{ML}, v{ML+1}, v{ML+2}")
        A(f"v_max_f32 v{MM}, v{MM}, v{ML+3}")
        for i in range(4): A(f"v_sub_f32 v{F+i}, v{ML+i}, v{MM}")
        for i in range(4): A(f"v_exp_f32 v{F+i}, v{F+i}")
        A("s_nop 0")
        A(f"v_mul_f32 v{LL}, v{F}, v{ML+4}")
        for i in range(1, 4): A(f"v_fmac_f32 v{LL}, v{F+i}, v{ML+4+i}")
        if normalize:
            A(f"v_rcp_f32 v{LL}, v{LL}")
            A("s_nop 0")
            for i in range(4): A(f"v_mul_f32 v{F+i}, v{F+i}, v{LL}")
    def merge_vals(n):
        for t in range(n): A(f"v_mul_f32 v{PO+t}, v{F}, v{PO+t}")
        for w in range(1, 4):
            for t in range(n): A(f"v_fmac_f32 v{PO+t}, v{F+w}, v{PO+w*n+t}")

    A.c("mark every hand-off slot of this workgroup as not yet written")
    if not nox & 16:
        A(f"global_store_dwordx4 v{VY}, {vr(SQ, 4)}, {sr(P_WS, 2)} {stf0}")
        A("s_mov_b32 exec_hi, 0xf000000f")
        A(f"global_store_dwordx4 v{H_T+9}, {vr(SQ, 4)}, {sr(P_WS, 2)} {stf0}")
        A("s_mov_b64 exec, -1")
    A(f"buffer_load_dwordx4 {vr(H_XQ, 4)}, v{H_OX}, {sr(R_X, 4)}, s{S_XO} offen")
    for grp in range(8): wload_grp(grp, 8192, H_OQ, wqaflags)
    if not nobar0: A("s_barrier")
    build_masks(H_MA, H_LANE, H_T)
    A(f"s_mov_b32 s{S_SEL0}, 0x01000100")
    A(f"s_mov_b32 s{S_SEL1}, 0x03020302")
    zero_D()
    A(f"v_bfe_u32 v{H_T}, v{H_LANE}, 2, 2")
    A(f"v_lshrrev_b32 v{H_T+1}, 4, v{H_LANE}")
    A(f"v_and_b32 v{H_E}, 3, v{H_LANE}")
    A(f"v_lshl_add_u32 v{H_E}, v{H_T}, 3, v{H_E}")
    A(f"v_lshl_add_u32 v{H_E}, v{H_T+1}, 5, v{H_E}")
    A(f"s_lshl_b32 s{S_I}, s{HW}, 9")
    A(f"v_lshlrev_b32 v{H_E}, 2, v{H_E}")
    A(f"v_add_u32 v{H_E}, s{S_I}, v{H_E}")
    A(f"v_mov_b32 v{H_T}, 0")
    A(f"v_mov_b32 v{H_T+1}, {L_CNT}")
    A(f"ds_write_b32 v{H_T+1}, v{H_T}")
    A("s_waitcnt vmcnt(32)")
    xb_from_xq()
    for grp in range(8):
        A(f"s_waitcnt vmcnt({(7 - grp) * 4})")
        gemv_grp(grp)
    reduce_D(H_T, H_T + 1)
    A(f"ds_write_b32 v{H_E}, v{H_T} offset:{L_QA}")
    A(f"ds_write_b32 v{H_E}, v{H_T+1} offset:{L_QA + 16}")
    A("s_waitcnt lgkmcnt(0)")
    A("s_barrier")
    stamp(0)
    A(f"v_mov_b32 v{H_T+8}, s{S_U}")
    A(f"v_mov_b32 v{H_T+9}, 1")
    A(f"s_cmp_lg_u32 s{HW}, {99 if nox & 32 else 3}")
    A("s_cbranch_scc1 L_noflag")
    A("s_mov_b64 exec, 1")
    A(f"global_store_byte v{H_T+8}, v{H_T+9}, {sr(P_DBG, 2)} sc1")
    A("s_mov_b64 exec, -1")
    A.label("L_noflag")
    A.c("---- q_B of head hq = 4*hkv + s (same index as the A head), published to the 4 sibling workgroups")
    A(f"s_mov_b64 {sr(R_X, 2)}, {sr(P_BX, 2)}")
    A(f"s_mov_b64 {sr(R_W, 2)}, {sr(P_BWQ, 2)}")
    zero_D()
    A(f"buffer_load_dwordx4 {vr(H_XQ, 4)}, v{H_OX}, {sr(R_X, 4)}, s{S_XO} offen")
    for grp in range(qbPD): wload_grp(grp, 8192, H_OQ, wflags)
    A(f"s_lshl_b32 s{S_G}, s{S_B}, 3")
    A(f"s_add_u32 s{S_G}, s{S_G}, s{S_X}")
    A(f"s_lshl_b32 s{S_I}, s{S_B}, 5")
    A(f"s_add_u32 s{S_BA}, s{P_DBG}, s{S_I}")
    A(f"s_addc_u32 s{S_BA+1}, s{P_DBG+1}, 0")
    A(f"s_lshl_b32 s{S_I}, s{S_B}, 10")
    A(f"s_add_u32 s{S_I}, s{S_I}, s{S_H}")
    A(f"s_lshl_b32 s{S_I}, s{S_I}, 7")
    A(f"s_add_u32 s{S_I}, s{S_I}, {W_Y}")
    A(f"v_lshrrev_b32 v{RA}, 3, v{H_LANE}")
    A(f"v_lshlrev_b32 v{RA}, 12, v{RA}")
    A(f"v_and_b32 v{H_T}, 7, v{H_LANE}")
    A(f"v_lshl_add_u32 v{RA}, v{H_T}, 4, v{RA}")
    A(f"v_add_u32 v{RA}, s{S_I}, v{RA}")
    for i in range(1, 4): A(f"v_add_u32 v{RA+i}, {i * 32768}, v{RA}")
    A(f"v_and_b32 v{RO}, 3, v{H_LANE}")
    A(f"v_bfe_u32 v{H_T}, v{H_LANE}, 4, 1")
    A(f"v_lshl_add_u32 v{RO}, v{H_T}, 3, v{RO}")
    A(f"v_bfe_u32 v{H_T}, v{H_LANE}, 3, 1")
    A(f"v_lshl_add_u32 v{RO}, v{H_T}, 2, v{RO}")
    A(f"v_bfe_u32 v{H_T}, v{H_LANE}, 2, 1")
    A(f"v_lshl_add_u32 v{RO}, v{H_T}, 9, v{RO}")
    A(f"s_lshl_b32 s{S_I}, s{S_B}, 6")
    A(f"s_add_u32 s{S_I}, s{S_I}, s{S_H}")
    A(f"s_lshl_b32 s{S_I}, s{S_I}, 4")
    A(f"v_add_lshl_u32 v{RO}, v{RO}, s{S_I}, 1")
    A(f"v_lshlrev_b32 v{VP}, 1, v{H_OX}")
    A(f"v_mov_b32 v{VM}, 0")
    A(f"v_mov_b32 v{VNAN}, 0x7fc07fc0")
    A(f"s_waitcnt vmcnt({qbPD * 4})")
    xb_from_xq()
    for grp in range(8):
        A(f"s_waitcnt vmcnt({(min(qbPD, 8 - grp) - 1) * 4})")
        if grp + qbPD < 8: wload_grp(grp + qbPD, 8192, H_OQ, wflags)
        gemv_grp(grp)
    reduce_D(H_T, H_T + 1)
    A(f"ds_write_b32 v{H_E}, v{H_T} offset:{L_Q2}")
    A(f"ds_write_b32 v{H_E}, v{H_T+1} offset:{L_Q2 + 16}")
    A(f"v_mov_b32 v{H_T+2}, {L_CNT}")
    A(f"v_mov_b32 v{H_T+3}, 1")
    A("s_waitcnt lgkmcnt(0)")
    A("s_mov_b64 exec, 1")
    A(f"ds_add_rtn_u32 v{H_T+4}, v{H_T+2}, v{H_T+3}")
    A("s_mov_b64 exec, -1")
    A("s_waitcnt lgkmcnt(0)")
    A(f"v_readfirstlane_b32 s{S_T2}, v{H_T+4}")
    A(f"s_cmp_lg_u32 s{S_T2}, 3")
    A("s_cbranch_scc1 L_noq")
    A.c("the last of the 4 waves sums the partials and publishes q_B")
    A(f"v_lshlrev_b32 v{H_T}, 1, v{H_L16}")
    A("s_mov_b64 exec, 0xffff")
    for w in range(4):
        A(f"ds_read_b128 {vr(PO + 8 * w, 4)}, v{H_T} offset:{L_Q2 + w * 512}")
        A(f"ds_read_b128 {vr(PO + 8 * w + 4, 4)}, v{H_T} offset:{L_Q2 + w * 512 + 16}")
    A(f"s_lshl_b32 s{S_I}, s{S_U}, 8")
    A(f"s_add_u32 s{S_I}, s{S_I}, {W_QB}")
    A(f"v_add_u32 v{H_T+1}, s{S_I}, v{H_L16}")
    A("s_waitcnt lgkmcnt(0)")
    for i in range(0, 8, 2):
        A(f"v_pk_add_f32 {vr(PO + i, 2)}, {vr(PO + i, 2)}, {vr(PO + 8 + i, 2)}")
        A(f"v_pk_add_f32 {vr(PO + 16 + i, 2)}, {vr(PO + 16 + i, 2)}, {vr(PO + 24 + i, 2)}")
    for i in range(0, 8, 2):
        A(f"v_pk_add_f32 {vr(PO + i, 2)}, {vr(PO + i, 2)}, {vr(PO + 16 + i, 2)}")
    for i in range(4):
        A(f"v_cvt_pk_bf16_f32 v{SQ+i}, v{PO+2*i}, v{PO+2*i+1}")
    sanitize([SQ, SQ + 1, SQ + 2, SQ + 3], VNAN)
    if not nox & 1: A(f"global_store_dwordx4 v{H_T+1}, {vr(SQ, 4)}, {sr(P_WS, 2)} {stf}")
    A("s_mov_b64 exec, -1")
    A.label("L_noq")
    stamp(14)
    A(f"s_cmp_lg_u32 s{HW}, {99 if nox & 1 else 0}")
    A("s_cbranch_scc1 L_qbdone")
    for _ in range(qsleep): A("s_sleep 127")
    A.c("every workgroup of this batch has marked its slots")
    A(f"s_mov_b32 s{S_I}, {spinmax}")
    A("s_branch L_z1")
    A.label("L_z")
    A(f"s_sleep {sleep}")
    A.label("L_z1")
    A(f"s_load_dwordx8 {sr(S_PV, 8)}, {sr(S_BA, 2)}, 0x0 glc")
    A(f"s_sub_u32 s{S_I}, s{S_I}, 1")
    A("s_waitcnt lgkmcnt(0)")
    A("s_cbranch_scc1 L_zx")
    A(f"s_and_b64 {sr(S_PV, 2)}, {sr(S_PV, 2)}, {sr(S_PV + 2, 2)}")
    A(f"s_and_b64 {sr(S_PV + 4, 2)}, {sr(S_PV + 4, 2)}, {sr(S_PV + 6, 2)}")
    A(f"s_and_b64 {sr(S_PV, 2)}, {sr(S_PV, 2)}, {sr(S_PV + 4, 2)}")
    A(f"s_and_b32 s{S_PV}, s{S_PV}, s{S_PV+1}")
    A(f"s_cmp_lg_u32 s{S_PV}, 0x01010101")
    A("s_cbranch_scc1 L_z")
    A.label("L_zx")
    A(f"s_lshl_b32 s{S_I}, s{S_G}, 10")
    A(f"s_add_u32 s{S_I}, s{S_I}, {W_QB}")
    A(f"v_add_u32 v{H_T+1}, s{S_I}, v{H_L16}")
    gather("q", [(PO, H_T + 1, 0)], sleep, sleep, 0)
    A(f"ds_write_b128 v{H_L16}, {vr(PO, 4)} offset:{L_QB}")
    A("s_waitcnt lgkmcnt(0)")
    A.label("L_qbdone")
    stamp(1)
    A("s_barrier")
    wo_preload(P_BWO)
    A(f"s_lshl_b32 s{S_I}, s{HW}, 9")
    A(f"v_add_u32 v{H_T+1}, s{S_I}, v{H_L16}")
    A(f"s_lshl_b32 s{S_I}, s{HW}, 5")
    A(f"v_mov_b32 v{H_T+2}, s{S_I}")
    A(f"v_add_u32 v{H_T}, s{S_SL}, v{H_L16}")
    stamp(15)
    A("s_barrier")
    stamp(2)
    A.c("---- B stage 1: merge head hw over the 4 streamer waves, publish (o[128], m, l)")
    for w in range(4):
        A(f"ds_read_b128 {vr(PO + 4 * w, 4)}, v{H_T+1} offset:{L_PB + w * 2048}")
    A(f"ds_read_b128 {vr(ML, 4)}, v{H_T+2} offset:{L_MLB}")
    A(f"ds_read_b128 {vr(ML + 4, 4)}, v{H_T+2} offset:{L_MLB + 16}")
    A("s_waitcnt lgkmcnt(0)")
    merge_factors(False)
    merge_vals(4)
    A("s_mov_b32 exec_lo, 0")
    A("s_mov_b32 exec_hi, 1")
    A(f"v_mov_b32 v{PO}, v{MM}")
    A(f"v_mov_b32 v{PO+1}, v{LL}")
    A("s_mov_b32 exec_lo, -1")
    sanitize([PO, PO + 1, PO + 2, PO + 3], VNAN)
    if not nox & 2: A(f"global_store_dwordx4 v{H_T}, {vr(PO, 4)}, {sr(P_WS, 2)} {stf}")
    A("s_mov_b64 exec, -1")
    A(f"s_cmp_lg_u32 s{HW}, {99 if nox & 2 else 0}")
    A("s_cbranch_scc1 L_polled")
    for _ in range(psleep): A("s_sleep 127")
    A(f"s_lshl_b32 s{S_I}, s{S_G}, 4")
    A(f"s_add_u32 s{S_I}, s{S_I}, s{S_S}")
    A(f"s_lshl_b32 s{S_I}, s{S_I}, 10")
    A(f"v_add_u32 v{H_T+1}, s{S_I}, v{H_L16}")
    for p in range(1, 4): A(f"v_add_u32 v{H_T+1+p}, {4096 * p}, v{H_T+1}")
    A("s_mov_b32 exec_hi, 1")
    gather("p", [(PO + 4 * p, H_T + 1 + p, 0) for p in range(4)], sleep, sleep, 0)
    for p in range(4):
        A(f"ds_write_b128 v{H_L16}, {vr(PO + 4 * p, 4)} offset:{L_P2 + p * 640}")
    A("s_mov_b64 exec, -1")
    A("s_waitcnt lgkmcnt(0)")
    A.label("L_polled")
    A(f"s_mov_b32 s{S_PH2}, 0")
    A("s_waitcnt vmcnt(0)")
    stamp(8)
    A("s_barrier")
    stamp(9)
    for p in range(4):
        A(f"ds_read_b64 {vr(H_B + 2 * p, 2)}, v{VM} offset:{L_P2 + p * 640 + 512}")
    for p in range(4):
        A(f"ds_read_b128 {vr(PO + 8 * p, 4)}, v{VP} offset:{L_P2 + p * 640}")
        A(f"ds_read_b128 {vr(PO + 8 * p + 4, 4)}, v{VP} offset:{L_P2 + p * 640 + 16}")
    A("s_waitcnt lgkmcnt(0)")
    for p in range(4):
        A(f"v_mov_b32 v{ML+p}, v{H_B+2*p}")
        A(f"v_mov_b32 v{ML+4+p}, v{H_B+2*p+1}")
    A.label("L_project")
    A.c("---- shared by B and A: merge 4 partials, normalise, project")
    merge_factors(True)
    merge_vals(8)
    zero_D()
    for t in range(8): A(f"v_cvt_pk_bf16_f32 v{H_XB+t}, v{PO+t}, v{PO+t}")
    for grp in range(8): gemv_grp(grp)
    A("s_nop 7")
    for k, (ra, rb) in enumerate([(0, 2), (1, 3), (4, 6), (5, 7)]):
        A(f"v_add_f32_dpp v{H_T+k}, v{H_D+ra}, v{H_D+ra} row_ror:8 row_mask:0xf bank_mask:0x3")
    for k, (ra, rb) in enumerate([(0, 2), (1, 3), (4, 6), (5, 7)]):
        A(f"v_add_f32_dpp v{H_T+k}, v{H_D+rb}, v{H_D+rb} row_ror:8 row_mask:0xf bank_mask:0xc")
    A(f"s_cmp_lg_u32 s{S_PH2}, 0")
    A("s_cbranch_scc1 L_atail")
    for k in range(4):
        A(f"v_add_f32_dpp v{YS+k}, v{H_T+k}, v{H_T+k} row_shr:4 row_mask:0xf bank_mask:0xa")
    stamp(3)
    A.c("---- A: preload wo")
    wo_preload(P_AWO)
    if dry:
        A(f"s_cmp_lg_u32 s{HW}, 1")
        A("s_cbranch_scc1 L_dryret")
        A("s_mov_b64 exec, 0")
        A("s_branch L_finA")
        A.label("L_dryret")
        A("s_mov_b64 exec, -1")
    A(f"s_mov_b32 s{S_PH2}, 1")
    A("s_waitcnt vmcnt(0)")
    stamp(13)
    A("s_barrier")
    A(f"ds_read_b128 {vr(ML, 4)}, v{VM} offset:{L_MLA}")
    A(f"ds_read_b128 {vr(ML + 4, 4)}, v{VM} offset:{L_MLA + 16}")
    for w in range(4):
        A(f"ds_read_b128 {vr(PO + 8 * w, 4)}, v{VP} offset:{L_PA + w * 512}")
        A(f"ds_read_b128 {vr(PO + 8 * w + 4, 4)}, v{VP} offset:{L_PA + w * 512 + 16}")
    stamp(4)
    A("s_waitcnt lgkmcnt(0)")
    A("s_branch L_project")
    A.label("L_atail")
    for k in range(4):
        A(f"v_add_f32_dpp v{YS+k}, v{H_T+k}, v{H_T+k} row_shl:4 row_mask:0xf bank_mask:0x5")
    sanitize([YS, YS + 1, YS + 2, YS + 3], VNAN)
    if not nox & 8: A(f"global_store_dwordx4 v{VY}, {vr(YS, 4)}, {sr(P_WS, 2)} {stfy}")
    stamp(5)
    A(f"s_cmp_lg_u32 s{HW}, {99 if nox & 8 else 0}")
    A("s_cbranch_scc1 L_fin")
    gather("y", [(PO + 4 * i, RA + i, 0) for i in range(4)], psl[0], psl[1], psl[2])
    stamp(6)
    for i in (0, 2):
        A(f"v_pk_add_f32 {vr(PO + i, 2)}, {vr(PO + i, 2)}, {vr(PO + 4 + i, 2)}")
        A(f"v_pk_add_f32 {vr(PO + 8 + i, 2)}, {vr(PO + 8 + i, 2)}, {vr(PO + 12 + i, 2)}")
    for i in (0, 2):
        A(f"v_pk_add_f32 {vr(PO + i, 2)}, {vr(PO + i, 2)}, {vr(PO + 8 + i, 2)}")
    A("s_nop 0")
    A(f"v_add_f32_dpp v{H_T}, v{PO}, v{PO} row_ror:8 row_mask:0xf bank_mask:0x3")
    A(f"v_add_f32_dpp v{H_T+1}, v{PO+1}, v{PO+1} row_ror:8 row_mask:0xf bank_mask:0x3")
    A(f"v_add_f32_dpp v{H_T}, v{PO+2}, v{PO+2} row_ror:8 row_mask:0xf bank_mask:0xc")
    A(f"v_add_f32_dpp v{H_T+1}, v{PO+3}, v{PO+3} row_ror:8 row_mask:0xf bank_mask:0xc")
    A("s_nop 1")
    A(f"v_permlane16_swap_b32 v{H_T}, v{H_T+1}")
    A(f"v_add_f32 v{H_T}, v{H_T}, v{H_T+1}")
    A(f"v_mov_b32 v{H_T+1}, v{H_T}")
    A("s_nop 1")
    A(f"v_permlane32_swap_b32 v{H_T}, v{H_T+1}")
    A(f"v_add_f32 v{H_T}, v{H_T}, v{H_T+1}")
    A(f"v_cvt_pk_bf16_f32 v{H_T}, v{H_T}, v{H_T}")
    A("s_mov_b32 exec_hi, 0")
    A(f"global_store_short v{RO}, v{H_T}, {sr(P_OUT, 2)}")
    if ts:
        A("s_waitcnt vmcnt(0)")
        stamp(7)
    A.label("L_fin")
    flush_stamps()
    A.label("L_end")
    A("s_endpgm")
    A.L += ['.section .rodata,"a"', ".p2align 6", f".amdhsa_kernel {NAME}",
            "  .amdhsa_next_free_vgpr 256", f"  .amdhsa_next_free_sgpr {96 if ts else 72}", "  .amdhsa_accum_offset 256",
            "  .amdhsa_group_segment_fixed_size 0", "  .amdhsa_kernarg_size 104", "  .amdhsa_user_sgpr_count 2",
            "  .amdhsa_user_sgpr_kernarg_segment_ptr 1", "  .amdhsa_system_sgpr_workgroup_id_x 1",
            "  .amdhsa_float_denorm_mode_32 3", ".end_amdhsa_kernel"]
    return A.text()

if __name__ == "__main__":
    out = sys.argv[1] if len(sys.argv) > 1 else "concat_heads__mha_block_cached__gqa_block_cached__decode.s"
    kw = {}
    for a in sys.argv[2:]:
        k, v = a.split("=", 1)
        try: v = int(v)
        except ValueError:
            if v.startswith("("): v = eval(v)
        kw[k] = v
    open(out, "w").write(gen(**kw))
```

```python
import sys, math, struct
NAME = "concat_heads__mha_block_cached__gqa_block_cached__decode_kernel"

HEADER = """\
"""

def f32bits(x):
    return struct.unpack("<I", struct.pack("<f", x))[0]

class Asm:
    def __init__(self):
        self.L = []
    def __call__(self, s):
        self.L.append("  " + s.rstrip())
    def label(self, s):
        self.L.append(s + ":")
    def c(self, s):
        self.L.append("  ; " + s)
    def text(self):
        return "\n".join(self.L) + "\n"

def vr(b, n=1):
    return f"v{b}" if n == 1 else f"v[{b}:{b+n-1}]"
def sr(b, n=1):
    return f"s{b}" if n == 1 else f"s[{b}:{b+n-1}]"

L_QA = 0
L_QB = 2048
L_PA = 3072
L_MLA = 5120
L_MLB = 5184
L_CNT = 5376
L_Q2 = 5632
L_PB = 8192
L_P2 = 16384
LDS_BYTES = 19456
W_PB = 0
W_Y = 1 << 20
W_QB = 2 << 20
W_TS = 4 << 20

def gen(D=3, PT=8, PRE=2, kvflags="nt", wflags="nt", qbPD=4, ts=0, sleep=48, dry=1, now=0, nox=0, dyn=1,
        spinmax=1 << 16, psl=(8, 1, 16), ppl=(16, 1, 8), hprio=3, zsleep=6, wot=4, qbsleep=0, xr=0, dbgts=0, remap=2, fine=2, dry2=1, rot=0, xm=0, wotb=12, tlb=1, outf=""):
    RB, PP = 4, 2
    assert D <= RB - 1 and PT % 4 == 0 and (PT + D) * 4 <= 60
    A = Asm()
    A.L.append(HEADER.rstrip("\n"))
    A.L.append(f"; @launch grid=(256,1,1) block=(512,1,1) lds={LDS_BYTES}")
    A.L += ['.amdgcn_target "amdgcn-amd-amdhsa--gfx950"', ".text", f".globl {NAME}", ".p2align 8",
            f".type {NAME},@function", f"{NAME}:"]
    P_AX, P_AK, P_AV, P_AWQ, P_AWO, P_BX, P_BK, P_BV, P_BWQ, P_BWO, P_OUT, P_DBG, P_WS = [4 + 2 * i for i in range(13)]
    A("s_cmp_ge_u32 s2, 256")
    A("s_cbranch_scc1 L_end")
    if xr: A(f"s_xor_b32 s2, s2, {xr}")
    S_S, S_HQ, S_B, S_H = 30, 31, 60, 61
    def do_remap():
        A.c("siblings (wg & ~3 after the remap) sit on XCDs {0,3,5,6} or {1,2,4,7} under round-robin placement (speed only)")
        A("s_lshr_b32 s3, s2, 1")
        A("s_xor_b32 s3, s3, s2")
        A("s_and_b32 s3, s3, 1")
        A("s_lshl_b32 s3, s3, 2")
        A("s_xor_b32 s2, s2, s3")
    A("s_load_dwordx16 s[4:19], s[0:1], 0")
    A("s_load_dwordx8 s[20:27], s[0:1], 64")
    A("s_load_dwordx2 s[28:29], s[0:1], 96")
    A("v_lshrrev_b32 v1, 6, v0")
    A("v_and_b32 v2, 63, v0")
    if remap == 1: do_remap()
    A(f"s_and_b32 s{S_H}, s2, 7")
    A(f"s_lshl_b32 s{S_H}, s{S_H}, 2")
    A(f"s_bfe_u32 s{S_S}, s2, 0x20003")
    A(f"s_add_u32 s{S_H}, s{S_H}, s{S_S}")
    if remap == 2: do_remap()
    A("v_readfirstlane_b32 s3, v1")
    A(f"s_and_b32 s{S_S}, s2, 3")
    A(f"s_and_b32 s{S_HQ}, s2, 31")
    A(f"s_lshr_b32 s{S_B}, s2, 5")
    if ts:
        for i in range(16): A(f"s_mov_b32 s{80 + i}, 0")
    A("s_cmp_ge_u32 s3, 4")
    A("s_cbranch_scc1 L_helper")

    def stamp(slot):
        if not ts: return
        A("s_memrealtime s[58:59]")
        A("s_waitcnt lgkmcnt(0)")
        A(f"s_mov_b32 s{80 + slot}, s58")
    def flush_stamps(helper=False):
        if not ts: return
        A("s_mov_b64 exec, -1")
        A("v_mov_b32 v9, 0")
        for i in range(16): A(f"v_writelane_b32 v9, s{80 + i}, {i}")
        A("s_lshl_b32 s72, s2, 3")
        A("s_add_u32 s72, s72, s3")
        A("s_lshl_b32 s72, s72, 6")
        A(f"s_add_u32 s72, s72, {W_TS}")
        A("v_lshlrev_b32 v8, 2, v2")
        A("v_add_u32 v8, s72, v8")
        A("s_mov_b64 exec, 0xffff")
        A(f"global_store_dword v8, v9, s[{P_WS}:{P_WS+1}]")

    def build_masks(MA, vj, vt):
        A(f"v_and_b32 v{vt}, 1, v{vj}")
        A(f"v_cmp_eq_u32 vcc, 1, v{vt}")
        A(f"v_mov_b32 v{vt}, 0xffff")
        A(f"v_mov_b32 v{vt+1}, 0xffff0000")
        A(f"v_cndmask_b32 v{vt}, v{vt}, v{vt+1}, vcc")
        A(f"v_bfe_u32 v{vt+1}, v{vj}, 1, 3")
        for k in range(8):
            A(f"v_cmp_eq_u32 vcc, {k}, v{vt+1}")
            A("s_nop 1")
            A(f"v_cndmask_b32 v{MA+k}, 0, v{vt}, vcc")

    def bank_reduce(src, dst, Ta, Tb):
        A(f"v_add_f32_dpp v{Ta}, v{src[0]}, v{src[0]} row_ror:8 row_mask:0xf bank_mask:0x3")
        A(f"v_add_f32_dpp v{Tb}, v{src[1]}, v{src[1]} row_ror:8 row_mask:0xf bank_mask:0x3")
        A(f"v_add_f32_dpp v{Ta}, v{src[2]}, v{src[2]} row_ror:8 row_mask:0xf bank_mask:0xc")
        A(f"v_add_f32_dpp v{Tb}, v{src[3]}, v{src[3]} row_ror:8 row_mask:0xf bank_mask:0xc")
        A("s_nop 0")
        A(f"v_add_f32_dpp v{dst}, v{Ta}, v{Ta} row_shl:4 row_mask:0xf bank_mask:0x5")
        A(f"v_add_f32_dpp v{dst}, v{Tb}, v{Tb} row_shr:4 row_mask:0xf bank_mask:0xa")

    V_OFF, V_LANE, VADDR = 1, 2, 3
    QA, MA = 4, 8
    M_A, L_A, T1, T2, MN, VML, AL, PPv, VPA, VPB, VMB = 16, 17, 18, 19, 20, 21, 22, 24, 28, 29, 30
    DA, SS, TT, UU, BOP = 32, 40, 44, 52, 56
    RING = 64
    TMP = 128
    QB, DB, MB, M_B, L_B, SB = 128, 144, 152, 154, 155, 156
    assert TMP + PT * 16 <= 256
    SK, SV = 32, 36
    S_OFF, S_CNT, S_T, S_C, S_OFFB, S_CL, S_CA = 40, 41, 42, 43, 44, 45, 46

    def breg(t):
        return TMP + t * 16 if t < PT else RING + ((t - PT) % RB) * 16
    def issue(base, isV, pair):
        s = SV if isV else SK
        if pair == 0:
            so = f"s{S_OFF}"
        else:
            A(f"s_add_u32 s{S_T}, s{S_OFF}, {pair * 16384}")
            so = f"s{S_T}"
        for j in range(4):
            A(f"buffer_load_dwordx4 {vr(base + 4 * j, 4)}, v{V_OFF}, {sr(s, 4)}, {so} offen offset:{j * 1024} {kvflags}")

    A.c("---------------- streamer ----------------")
    A(f"v_lshlrev_b32 v{V_OFF}, 4, v0")
    A(f"s_mul_i32 s{S_T}, s3, 3072")
    A(f"v_add_u32 v{V_OFF}, s{S_T}, v{V_OFF}")
    A(f"s_lshl_b32 s{S_OFF}, s{S_B}, 5")
    A(f"s_add_u32 s{S_OFF}, s{S_OFF}, s{S_H}")
    A(f"s_lshl_b32 s{S_OFF}, s{S_OFF}, 20")
    if rot:
        A(f"s_mov_b32 s{S_CL}, s{S_OFF}")
        A(f"s_mul_i32 s{S_T}, s2, {rot}")
        A(f"s_lshr_b32 s{S_T}, s{S_T}, 3")
        A(f"s_and_b32 s{S_T}, s{S_T}, 7")
        A(f"s_lshl_b32 s{S_T}, s{S_T}, 17")
        A(f"s_add_u32 s{S_OFF}, s{S_OFF}, s{S_T}")
    A(f"s_mov_b32 s{SK+2}, {256 << 20}")
    A(f"s_mov_b32 s{SK+3}, 0x00020000")
    A(f"s_mov_b32 s{SV+2}, {256 << 20}")
    A(f"s_mov_b32 s{SV+3}, 0x00020000")
    A("s_waitcnt lgkmcnt(0)")
    A(f"s_mov_b64 {sr(SK, 2)}, {sr(P_AK, 2)}")
    A(f"s_mov_b64 {sr(SV, 2)}, {sr(P_AV, 2)}")
    stamp(6)
    for t in range(PT + D):
        if t == PRE: A("s_barrier")
        issue(breg(t), t & 1, t // 2)
    stamp(4)
    A(f"s_add_u32 s{S_OFF}, s{S_OFF}, {PT // 2 * 16384}")
    A(f"s_lshr_b32 s{S_OFFB}, s2, 2")
    A(f"s_lshl_b32 s{S_OFFB}, s{S_OFFB}, 20")
    A(f"s_andn2_b32 s{S_T}, s2, 3")
    A(f"s_lshl_b32 s{S_T}, s{S_T}, 2")
    if fine != 2: A(f"s_add_u32 s{S_T}, s{S_T}, s3")
    A(f"s_lshl_b32 s{S_T}, s{S_T}, 10")
    A(f"s_add_u32 s{S_CA}, s{P_WS}, s{S_T}")
    A(f"s_addc_u32 s{S_CA+1}, s{P_WS+1}, 0")
    A(f"s_mov_b32 s{S_C}, {f32bits(math.log2(math.e) / math.sqrt(128.0)):#x}")
    build_masks(MA, V_LANE, T1)
    A(f"v_mov_b32 v{M_A}, 0xff800000")
    A(f"v_mov_b32 v{L_A}, 0")
    A(f"v_and_b32 v{VADDR}, 15, v{V_LANE}")
    A(f"v_lshlrev_b32 v{VADDR}, 5, v{VADDR}")
    A(f"v_bfe_u32 v{SS}, v{V_LANE}, 2, 2")
    A(f"v_lshrrev_b32 v{SS+1}, 4, v{V_LANE}")
    A(f"v_and_b32 v{SS+2}, 3, v{V_LANE}")
    A(f"v_lshlrev_b32 v{SS+1}, 7, v{SS+1}")
    A(f"v_lshl_add_u32 v{SS+1}, v{SS+2}, 2, v{SS+1}")
    A(f"v_lshl_add_u32 v{VPA}, v{SS}, 5, v{SS+1}")
    A(f"v_lshl_add_u32 v{VPB}, v{SS}, 9, v{SS+1}")
    A(f"s_lshl_b32 s{S_T}, s3, 9")
    A(f"v_add_u32 v{VPA}, s{S_T}, v{VPA}")
    A(f"s_lshl_b32 s{S_T}, s3, 11")
    A(f"v_add_u32 v{VPB}, s{S_T}, v{VPB}")
    A(f"s_lshl_b32 s{S_T}, s3, 2")
    A(f"v_mov_b32 v{VML}, s{S_T}")
    A(f"v_lshl_add_u32 v{VMB}, v{SS}, 5, v{VML}")
    A("s_barrier")
    Q0 = 32
    for w in range(4):
        A(f"ds_read_b128 {vr(Q0 + 8 * w, 4)}, v{VADDR} offset:{L_QA + w * 512}")
        A(f"ds_read_b128 {vr(Q0 + 8 * w + 4, 4)}, v{VADDR} offset:{L_QA + w * 512 + 16}")
    A("s_waitcnt lgkmcnt(0)")
    for i in range(0, 8, 2):
        A(f"v_pk_add_f32 {vr(Q0 + i, 2)}, {vr(Q0 + i, 2)}, {vr(Q0 + 8 + i, 2)}")
        A(f"v_pk_add_f32 {vr(Q0 + 16 + i, 2)}, {vr(Q0 + 16 + i, 2)}, {vr(Q0 + 24 + i, 2)}")
    for i in range(0, 8, 2):
        A(f"v_pk_add_f32 {vr(Q0 + i, 2)}, {vr(Q0 + i, 2)}, {vr(Q0 + 16 + i, 2)}")
    for i in range(4):
        A(f"v_cvt_pk_bf16_f32 v{QA+i}, v{Q0+2*i}, v{Q0+2*i+1}")
    for r in range(DA, DA + 8):
        A(f"v_mov_b32 v{r}, 0")
    stamp(0)
    if ts: A("s_getreg_b32 s85, hwreg(HW_REG_XCC_ID)")

    def softmax_tail(S, M, Lr, Dd):
        A("s_nop 1")
        A(f"v_permlane16_swap_b32 v{T1}, v{T2}")
        A(f"v_max_f32 v{T1}, v{T1}, v{T2}")
        A(f"v_mov_b32 v{T2}, v{T1}")
        A("s_nop 1")
        A(f"v_permlane32_swap_b32 v{T1}, v{T2}")
        A(f"v_max3_f32 v{MN}, v{T1}, v{T2}, v{M}")
        A(f"v_sub_f32 v{AL}, v{M}, v{MN}")
        for i, s in enumerate(S):
            A(f"v_sub_f32 v{PPv+i}, v{s}, v{MN}")
        A(f"v_exp_f32 v{AL}, v{AL}")
        for i in range(len(S)):
            A(f"v_exp_f32 v{PPv+i}, v{PPv+i}")
        A(f"v_mov_b32 v{M}, v{MN}")
        A(f"v_fma_f32 v{Lr}, v{Lr}, v{AL}, v{PPv}")
        for i in range(4):
            A(f"v_pk_mul_f32 {vr(Dd + 2 * i, 2)}, {vr(Dd + 2 * i, 2)}, {vr(AL, 2)} op_sel_hi:[1,0]")
        for i in range(1, len(S)):
            A(f"v_add_f32 v{Lr}, v{Lr}, v{PPv+i}")
    def qk_A(kb):
        for i in range(4):
            for u in range(4):
                if i == 0: A(f"v_dot2_f32_bf16 v{SS+u}, v{kb+4*u}, v{QA}, 0")
                else: A(f"v_dot2c_f32_bf16 v{SS+u}, v{kb+4*u+i}, v{QA+i}")
        bank_reduce([SS, SS + 1, SS + 2, SS + 3], UU, TT, TT + 1)
        A("s_nop 1")
        A(f"v_add_f32_dpp v{UU}, v{UU}, v{UU} quad_perm:[1,0,3,2] row_mask:0xf bank_mask:0xf")
        A("s_nop 1")
        A(f"v_add_f32_dpp v{UU}, v{UU}, v{UU} quad_perm:[2,3,0,1] row_mask:0xf bank_mask:0xf")
        A(f"v_mul_f32 v{SS}, s{S_C}, v{UU}")
        A(f"v_mul_f32 v{T1}, s{S_C}, v{UU}")
        A(f"v_mul_f32 v{T2}, s{S_C}, v{UU}")
        softmax_tail([SS], M_A, L_A, DA)
        A(f"v_cvt_pk_bf16_f32 v{T1}, v{PPv}, v{PPv}")
        for k in range(8):
            A(f"v_and_b32 v{BOP+k}, v{T1}, v{MA+k}")
    def pv(vb, Dd):
        for u in range(4):
            A(f"v_mfma_f32_16x16x16_bf16 {vr(Dd, 4)}, {vr(vb + 4 * u, 2)}, {vr(BOP + 2 * u, 2)}, {vr(Dd, 4)}")
            A(f"v_mfma_f32_16x16x16_bf16 {vr(Dd + 4, 4)}, {vr(vb + 4 * u + 2, 2)}, {vr(BOP + 2 * u, 2)}, {vr(Dd + 4, 4)}")
    def qk_B(kb):
        for u in range(4):
            for i in range(4):
                for h in range(4):
                    if i == 0: A(f"v_dot2_f32_bf16 v{SB+4*u+h}, v{kb+4*u}, v{QB+4*h}, 0")
                    else: A(f"v_dot2c_f32_bf16 v{SB+4*u+h}, v{kb+4*u+i}, v{QB+4*h+i}")
        for u in range(4):
            s = SB + 4 * u
            A(f"v_add_f32_dpp v{TT+2*u}, v{s}, v{s} row_ror:8 row_mask:0xf bank_mask:0x3")
            A(f"v_add_f32_dpp v{TT+2*u+1}, v{s+1}, v{s+1} row_ror:8 row_mask:0xf bank_mask:0x3")
            A(f"v_add_f32_dpp v{TT+2*u}, v{s+2}, v{s+2} row_ror:8 row_mask:0xf bank_mask:0xc")
            A(f"v_add_f32_dpp v{TT+2*u+1}, v{s+3}, v{s+3} row_ror:8 row_mask:0xf bank_mask:0xc")
        for u in range(4):
            A(f"v_add_f32_dpp v{UU+u}, v{TT+2*u}, v{TT+2*u} row_shl:4 row_mask:0xf bank_mask:0x5")
        for u in range(4):
            A(f"v_add_f32_dpp v{UU+u}, v{TT+2*u+1}, v{TT+2*u+1} row_shr:4 row_mask:0xf bank_mask:0xa")
        for u in range(4):
            A(f"v_add_f32_dpp v{UU+u}, v{UU+u}, v{UU+u} quad_perm:[1,0,3,2] row_mask:0xf bank_mask:0xf")
        for u in range(4):
            A(f"v_add_f32_dpp v{UU+u}, v{UU+u}, v{UU+u} quad_perm:[2,3,0,1] row_mask:0xf bank_mask:0xf")
        for u in range(4):
            A(f"v_mul_f32 v{SS+u}, s{S_C}, v{UU+u}")
        A(f"v_max3_f32 v{T1}, v{SS}, v{SS+1}, v{SS+2}")
        A(f"v_max_f32 v{T1}, v{T1}, v{SS+3}")
        A(f"v_mov_b32 v{T2}, v{T1}")
        softmax_tail([SS, SS + 1, SS + 2, SS + 3], M_B, L_B, DB)
        for u in range(4):
            A(f"v_cvt_pk_bf16_f32 v{SS+u}, v{PPv+u}, v{PPv+u}")
        for u in range(4):
            A(f"v_and_b32 v{BOP+2*u}, v{SS+u}, v{MB}")
            A(f"v_and_b32 v{BOP+2*u+1}, v{SS+u}, v{MB+1}")

    for t in range(PT):
        A(f"s_waitcnt vmcnt({(PT + D - 1 - t) * 4})")
        if t & 1:
            A("s_nop 0")
            pv(breg(t), DA)
        else:
            qk_A(breg(t))
    A(f"s_mov_b32 s{S_CNT}, {(64 - PT // 2) // PP}")

    S_O, S_CH = 48, 50
    def issue_at(base, isV, sreg):
        s = SV if isV else SK
        for j in range(4):
            A(f"buffer_load_dwordx4 {vr(base + 4 * j, 4)}, v{V_OFF}, {sr(s, 4)}, s{sreg} offen offset:{j * 1024} {kvflags}")
    def loopB_fine():
        assert D == 3
        NCH, CB, CSH = (256, 49, 12) if fine == 2 else (64, 13, 14)
        A.label("L_loopB")
        for t in range(RB):
            A(f"s_waitcnt vmcnt({(D - 1) * 4})")
            ti = (t + D) % RB
            p = ti // 2
            if t & 1:
                A("s_waitcnt lgkmcnt(0)")
                A(f"s_add_u32 s{S_CH+p}, s{S_CL}, {CB}")
                A(f"s_cmp_lt_u32 s{S_CH+p}, {NCH}")
                A(f"s_cbranch_scc1 L_more{t}")
                A(f"s_mov_b32 s{SK+2}, 0")
                A(f"s_mov_b32 s{SV+2}, 0")
                A(f"s_branch L_ns{t}")
                A.label(f"L_more{t}")
                A(f"s_lshl_b32 s{S_O+p}, s{S_CH+p}, {CSH}")
                A(f"s_add_u32 s{S_O+p}, s{S_O+p}, s{S_OFFB}")
                A(f"s_mov_b32 s{S_CL}, 1")
                A(f"s_atomic_add s{S_CL}, {sr(S_CA, 2)}, 640 glc")
                if ts: A("s_add_u32 s87, s87, 1")
                A.label(f"L_ns{t}")
            issue_at(RING + ti * 16, ti & 1, S_O + p)
            if t & 1:
                pv(RING + t * 16, DB)
                A(f"s_cmp_lt_u32 s{S_CH + 1 - p}, {NCH}")
                if t == 1: A("s_cbranch_scc0 L_finB")
                else: A("s_cbranch_scc1 L_loopB")
            else:
                qk_B(RING + t * 16)
    def loop(tag, qk, Dd):
        A.label(f"L_loop{tag}")
        for t in range(RB):
            A(f"s_waitcnt vmcnt({(D - 1) * 4})")
            ti = t + D
            if ti == RB and tag == "A":
                A(f"s_add_u32 s{S_OFF}, s{S_OFF}, {PP * 16384}")
                if rot:
                    A(f"s_and_b32 s{S_OFF}, s{S_OFF}, 0xfffff")
                    A(f"s_or_b32 s{S_OFF}, s{S_OFF}, s{S_CL}")
                A(f"s_cmp_lg_u32 s{S_CNT}, 1")
                A("s_cbranch_scc1 L_nsA")
                A(f"s_mov_b64 {sr(SK, 2)}, {sr(P_BK, 2)}")
                A(f"s_mov_b64 {sr(SV, 2)}, {sr(P_BV, 2)}")
                A(f"s_mov_b32 s{SK+2}, {64 << 20}")
                A(f"s_mov_b32 s{SV+2}, {64 << 20}")
                A(f"s_lshl_b32 s{S_OFF}, s{S_S}, 15")
                A(f"s_add_u32 s{S_OFF}, s{S_OFF}, s{S_OFFB}")
                A.label("L_nsA")
            if ti == RB and tag == "B":
                A("s_waitcnt lgkmcnt(0)")
                A(f"s_add_u32 s{S_CNT}, s{S_CL}, 9")
                A(f"s_cmp_lt_u32 s{S_CNT}, 32")
                A("s_cbranch_scc1 L_more")
                A(f"s_mov_b32 s{SK+2}, 0")
                A(f"s_mov_b32 s{SV+2}, 0")
                A("s_branch L_nsB")
                A.label("L_more")
                A(f"s_lshl_b32 s{S_OFF}, s{S_CNT}, 15")
                A(f"s_add_u32 s{S_OFF}, s{S_OFF}, s{S_OFFB}")
                if dyn:
                    A(f"s_mov_b32 s{S_CL}, 1")
                    A(f"s_atomic_add s{S_CL}, {sr(S_CA, 2)}, 640 glc")
                else:
                    A(f"s_add_u32 s{S_CL}, s{S_CL}, 4")
                if ts: A("s_add_u32 s87, s87, 1")
                A.label("L_nsB")
            issue(RING + (ti % RB) * 16, ti & 1, (ti % RB) // 2)
            if t & 1: pv(RING + t * 16, Dd)
            else: qk(RING + t * 16)
        if tag == "A":
            A(f"s_sub_u32 s{S_CNT}, s{S_CNT}, 1")
            A(f"s_cmp_lg_u32 s{S_CNT}, 0")
        else:
            A(f"s_cmp_lt_u32 s{S_CNT}, 32")
        A(f"s_cbranch_scc1 L_loop{tag}")
    loop("A", qk_A, DA)
    A.c("---- end of A: merge the 4 banks, partial to LDS")
    stamp(2)
    A(f"v_max_f32_dpp v{T1}, v{M_A}, v{M_A} row_ror:4 row_mask:0xf bank_mask:0xf")
    A(f"v_or_b32 v{MB}, v{MA}, v{MA+2}")
    A(f"v_or_b32 v{MB+1}, v{MA+1}, v{MA+3}")
    A(f"v_max_f32_dpp v{T1}, v{T1}, v{T1} row_ror:8 row_mask:0xf bank_mask:0xf")
    A(f"v_sub_f32 v{AL}, v{M_A}, v{T1}")
    A(f"v_exp_f32 v{AL}, v{AL}")
    A(f"ds_write_b32 v{VML}, v{T1} offset:{L_MLA}")
    A(f"v_mul_f32 v{L_A}, v{L_A}, v{AL}")
    for i in range(4):
        A(f"v_pk_mul_f32 {vr(DA + 2 * i, 2)}, {vr(DA + 2 * i, 2)}, {vr(AL, 2)} op_sel_hi:[1,0]")
    A(f"v_add_f32_dpp v{L_A}, v{L_A}, v{L_A} row_ror:4 row_mask:0xf bank_mask:0xf")
    bank_reduce([DA, DA + 1, DA + 2, DA + 3], UU, TT, TT + 1)
    A(f"v_add_f32_dpp v{L_A}, v{L_A}, v{L_A} row_ror:8 row_mask:0xf bank_mask:0xf")
    A(f"ds_write_b32 v{VPA}, v{UU} offset:{L_PA}")
    A(f"v_mov_b32 v{T2}, v{L_A}")
    bank_reduce([DA + 4, DA + 5, DA + 6, DA + 7], UU + 1, TT + 2, TT + 3)
    A(f"v_permlane16_swap_b32 v{L_A}, v{T2}")
    A(f"ds_write_b32 v{VPA}, v{UU+1} offset:{L_PA + 16}")
    A(f"v_add_f32 v{L_A}, v{L_A}, v{T2}")
    A(f"v_mov_b32 v{T2}, v{L_A}")
    A(f"v_or3_b32 v{MB}, v{MB}, v{MA+4}, v{MA+6}")
    A(f"v_or3_b32 v{MB+1}, v{MB+1}, v{MA+5}, v{MA+7}")
    A(f"v_permlane32_swap_b32 v{L_A}, v{T2}")
    A(f"v_add_f32 v{L_A}, v{L_A}, v{T2}")
    A(f"ds_write_b32 v{VML}, v{L_A} offset:{L_MLA + 16}")
    A(f"v_lshrrev_b32 v{T1}, 1, v{VADDR}")
    A(f"v_mov_b32 v{M_B}, 0xff800000")
    for r in [L_B] + list(range(DB, DB + 8)):
        A(f"v_mov_b32 v{r}, 0")
    A(f"s_sub_u32 s{S_CL}, s{S_S}, 5")
    A(f"s_add_u32 s{S_O+1}, s{S_OFF}, 16384")
    A(f"s_mov_b32 s{S_CH+1}, 0")
    if fine == 2:
        A(f"v_lshlrev_b32 v{V_OFF}, 4, v{V_LANE}")
        A(f"s_lshl_b32 s{S_T}, s3, 12")
        A(f"s_add_u32 s{S_O+1}, s{S_O+1}, s{S_T}")
        A(f"s_lshl_b32 s{S_CL}, s{S_S}, 2")
        A(f"s_add_u32 s{S_CL}, s{S_CL}, s3")
        A(f"s_sub_u32 s{S_CL}, s{S_CL}, 17")
    A("s_waitcnt lgkmcnt(0)")
    A("s_barrier")
    for h in range(4):
        A(f"ds_read_b128 {vr(QB + 4 * h, 4)}, v{T1} offset:{L_QB + h * 256}")
    A("s_waitcnt lgkmcnt(0)")
    stamp(3)
    if fine: loopB_fine()
    else: loop("B", qk_B, DB)
    A.label("L_finB")
    A.c("---- end of B: partials to LDS")
    A(f"v_mov_b32 v{T1}, v{L_B}")
    A(f"v_mov_b32 v{T2}, v{L_B}")
    A(f"ds_write_b32 v{VMB}, v{M_B} offset:{L_MLB}")
    A("s_nop 0")
    A(f"v_permlane16_swap_b32 v{T1}, v{T2}")
    A(f"v_add_f32 v{T1}, v{T1}, v{T2}")
    A(f"v_mov_b32 v{T2}, v{T1}")
    for r in range(4):
        A(f"ds_write_b32 v{VPB}, v{DB+r} offset:{L_PB + r * 32}")
        A(f"ds_write_b32 v{VPB}, v{DB+4+r} offset:{L_PB + r * 32 + 16}")
    A(f"v_permlane32_swap_b32 v{T1}, v{T2}")
    A(f"v_add_f32 v{T1}, v{T1}, v{T2}")
    A(f"ds_write_b32 v{VMB}, v{T1} offset:{L_MLB + 16}")
    A("s_waitcnt lgkmcnt(0)")
    if dry: A("s_cbranch_execz L_dryret")
    stamp(8)
    A("s_barrier")
    flush_stamps()
    A("s_endpgm")

    A.label("L_helper")
    A.c("---------------- helper ----------------")
    HW = 62
    H_OQ, H_LANE, H_OO, H_OX, H_E, H_L16 = 1, 2, 3, 4, 6, 7
    H_MA, H_XQ, H_XB, H_D, H_B, H_T = 8, 108, 20, 28, 36, 44
    ML, F = H_T + 8, H_T + 16
    MM, LL = H_T + 20, H_T + 21
    PO = H_T + 24
    VP, VS1, VM, VY, VNAN, VS2, VS3, VSL = 100, 101, 102, 103, 104, 105, 16, 17
    RA, RO = 120, 124
    YS, SQ = 112, 116
    W0 = 128
    R_X, R_W = 32, 36
    S_SEL0, S_SEL1, S_BASE, S_T2, S_I, S_PH2, S_XO, S_SL = 40, 41, 53, 43, 44, 45, 46, 49
    S_BA, S_PV = 54, 64
    if hprio: A(f"s_setprio {hprio}")
    A(f"s_sub_u32 s{HW}, s3, 4")
    A(f"v_lshlrev_b32 v{H_L16}, 4, v{H_LANE}")
    A(f"s_lshl_b32 s{S_SL}, s2, 2")
    A(f"s_add_u32 s{S_SL}, s{S_SL}, s{HW}")
    A(f"s_lshl_b32 s{S_SL}, s{S_SL}, 10")
    A(f"v_add_u32 v{VSL}, s{S_SL}, v{H_L16}")
    A(f"v_add_u32 v{VY}, {W_Y}, v{VSL}")
    A(f"s_lshr_b32 s{S_I}, s{S_SL}, 4")
    A(f"s_add_u32 s{S_I}, s{S_I}, {W_QB - 960}")
    A(f"v_add_u32 v{H_T+9}, s{S_I}, v{H_L16}")
    A(f"v_cmp_gt_u32 vcc, 60, v{H_LANE}")
    for i in range(4): A(f"v_mov_b32 v{SQ+i}, -1")
    A(f"v_cndmask_b32 v{H_T+9}, v{H_T+9}, v{VSL}, vcc")
    A(f"v_lshrrev_b32 v{H_OX}, 2, v{H_LANE}")
    A(f"v_lshlrev_b32 v{H_OX}, 4, v{H_OX}")
    A(f"v_and_b32 v{H_T}, 15, v{H_LANE}")
    A(f"v_lshlrev_b32 v{H_T}, 4, v{H_T}")
    A(f"v_lshrrev_b32 v{H_T+1}, 4, v{H_LANE}")
    A(f"v_lshl_add_u32 v{H_OQ}, v{H_T+1}, 18, v{H_T}")
    A(f"v_lshl_add_u32 v{H_OO}, v{H_T+1}, 15, v{H_T}")
    A(f"s_mov_b32 s{R_X+2}, 8192")
    A(f"s_mov_b32 s{R_X+3}, 0x00020000")
    A(f"s_mov_b32 s{R_W+2}, {0 if now else 4 << 20}")
    A(f"s_mov_b32 s{R_W+3}, 0x00020000")
    A(f"s_lshl_b32 s{S_XO}, s{S_B}, 10")
    A(f"s_lshl_b32 s{S_I}, s{HW}, 8")
    A(f"s_add_u32 s{S_XO}, s{S_XO}, s{S_I}")
    A(f"s_lshl_b32 s{S_BASE}, s{HW}, 20")
    A(f"s_lshl_b32 s{S_I}, s{S_H}, 8")
    A(f"s_add_u32 s{S_BASE}, s{S_BASE}, s{S_I}")
    A("s_waitcnt lgkmcnt(0)")
    A(f"s_mov_b64 {sr(R_X, 2)}, {sr(P_AX, 2)}")
    A(f"s_mov_b64 {sr(R_W, 2)}, {sr(P_AWQ, 2)}")

    def wload_grp(grp, stride, voff, flags):
        for u in range(4):
            off = (8 * u + grp) * stride
            rg = W0 + (grp * 4 + u) * 4
            imm = off & 4095 if stride == 1024 else 0
            so = off - imm
            if so:
                A(f"s_add_u32 s{S_I}, s{S_BASE}, {so}")
            A(f"buffer_load_dwordx4 {vr(rg, 4)}, v{voff}, {sr(R_W, 4)}, s{S_I if so else S_BASE} offen offset:{imm} {flags}")
    def gemv_grp(grp):
        for k in range(8):
            A(f"v_and_b32 v{H_B+k}, v{H_XB+grp}, v{H_MA+k}")
        for u in range(4):
            rg = W0 + (grp * 4 + u) * 4
            A(f"v_mfma_f32_16x16x16_bf16 {vr(H_D, 4)}, {vr(rg, 2)}, {vr(H_B + 2 * u, 2)}, {vr(H_D, 4)}")
            A(f"v_mfma_f32_16x16x16_bf16 {vr(H_D + 4, 4)}, {vr(rg + 2, 2)}, {vr(H_B + 2 * u, 2)}, {vr(H_D + 4, 4)}")
    def xb_from_xq():
        for grp in range(8):
            A(f"v_perm_b32 v{H_XB+grp}, v{H_XQ+grp//2}, v{H_XQ+grp//2}, s{S_SEL1 if grp & 1 else S_SEL0}")
    def zero_D():
        for i in range(8): A(f"v_mov_b32 v{H_D+i}, 0")
    def reduce_D(ulo, uhi):
        A("s_nop 7")
        bank_reduce([H_D, H_D + 1, H_D + 2, H_D + 3], ulo, H_T + 2, H_T + 3)
        bank_reduce([H_D + 4, H_D + 5, H_D + 6, H_D + 7], uhi, H_T + 4, H_T + 5)
    def sanitize(regs, nanreg):
        for i, r in enumerate(regs):
            A(f"v_cmp_eq_u32 {sr(S_PV + 2 * i, 2)}, -1, v{r}")
        for i, r in enumerate(regs):
            A(f"v_cndmask_b32 v{r}, v{r}, v{nanreg}, {sr(S_PV + 2 * i, 2)}")
    def gather(tag, loads, slp_many, slp_few, thr):
        A(f"s_mov_b64 s[56:57], exec")
        A(f"s_mov_b32 s{S_I}, {spinmax}")
        A.label(f"L_g{tag}")
        for dst, va in loads:
            A(f"global_load_dwordx4 {vr(dst, 4)}, v{va}, {sr(P_WS, 2)} sc1")
        A(f"s_sub_u32 s{S_I}, s{S_I}, 1")
        A(f"s_cbranch_scc1 L_gx{tag}")
        for n, (dst, va) in enumerate(loads):
            A(f"s_waitcnt vmcnt({len(loads) - 1 - n})")
            if n == 0:
                A(f"v_max3_u32 v{H_T}, v{dst}, v{dst+1}, v{dst+2}")
                A(f"v_max_u32 v{H_T}, v{H_T}, v{dst+3}")
            else:
                A(f"v_max3_u32 v{H_T}, v{H_T}, v{dst}, v{dst+1}")
                A(f"v_max3_u32 v{H_T}, v{H_T}, v{dst+2}, v{dst+3}")
        A(f"v_cmp_eq_u32 vcc, -1, v{H_T}")
        A("s_nop 0")
        A(f"s_cbranch_vccz L_gx{tag}")
        A("s_mov_b64 exec, vcc")
        if slp_many != slp_few:
            A(f"s_bcnt1_i32_b64 s{S_T2}, vcc")
            A(f"s_cmp_gt_u32 s{S_T2}, {thr}")
            A(f"s_cbranch_scc1 L_gl{tag}")
            A(f"s_sleep {slp_few}")
            A(f"s_branch L_g{tag}")
            A.label(f"L_gl{tag}")
        A(f"s_sleep {slp_many}")
        A(f"s_branch L_g{tag}")
        A.label(f"L_gx{tag}")
        A("s_mov_b64 exec, s[56:57]")
        A("s_waitcnt vmcnt(0)")
    def wo_preload(ptr, s_head, wot=wot):
        A(f"s_mov_b64 {sr(R_W, 2)}, {sr(ptr, 2)}")
        A(f"s_lshl_b32 s{S_BASE}, s{s_head}, 17")
        A(f"s_lshl_b32 s{S_I}, s{HW}, 8")
        A(f"s_add_u32 s{S_BASE}, s{S_BASE}, s{S_I}")
        for grp in range(8):
            wload_grp(grp, 1024, H_OO, wflags)
            if grp & 1: A(f"s_waitcnt vmcnt({wot})")
    def merge_factors(normalize):
        A(f"v_max3_f32 v{MM}, v{ML}, v{ML+1}, v{ML+2}")
        A(f"v_max_f32 v{MM}, v{MM}, v{ML+3}")
        for i in range(4): A(f"v_sub_f32 v{F+i}, v{ML+i}, v{MM}")
        for i in range(4): A(f"v_exp_f32 v{F+i}, v{F+i}")
        A("s_nop 0")
        A(f"v_mul_f32 v{LL}, v{F}, v{ML+4}")
        for i in range(1, 4): A(f"v_fmac_f32 v{LL}, v{F+i}, v{ML+4+i}")
        if normalize:
            A(f"v_rcp_f32 v{LL}, v{LL}")
            A("s_nop 0")
            for i in range(4): A(f"v_mul_f32 v{F+i}, v{F+i}, v{LL}")
    def merge_vals(n):
        for t in range(n): A(f"v_mul_f32 v{PO+t}, v{F}, v{PO+t}")
        for w in range(1, 4):
            for t in range(n): A(f"v_fmac_f32 v{PO+t}, v{F+w}, v{PO+w*n+t}")

    A.c("mark every hand-off slot of this workgroup as not yet written (the chunk counters start at -1 too)")
    A(f"global_store_dwordx4 v{VY}, {vr(SQ, 4)}, {sr(P_WS, 2)} sc1")
    A("s_mov_b32 exec_hi, 0xf000010f")
    A(f"global_store_dwordx4 v{H_T+9}, {vr(SQ, 4)}, {sr(P_WS, 2)} sc1")
    A("s_mov_b64 exec, -1")
    A(f"buffer_load_dwordx4 {vr(H_XQ, 4)}, v{H_OX}, {sr(R_X, 4)}, s{S_XO} offen")
    for grp in range(8): wload_grp(grp, 8192, H_OQ, wflags)
    A("s_barrier")
    build_masks(H_MA, H_LANE, H_T)
    A(f"s_mov_b32 s{S_SEL0}, 0x01000100")
    A(f"s_mov_b32 s{S_SEL1}, 0x03020302")
    zero_D()
    A(f"v_bfe_u32 v{H_T}, v{H_LANE}, 2, 2")
    A(f"v_lshrrev_b32 v{H_T+1}, 4, v{H_LANE}")
    A(f"v_and_b32 v{H_E}, 3, v{H_LANE}")
    A(f"v_lshl_add_u32 v{H_E}, v{H_T}, 3, v{H_E}")
    A(f"v_lshl_add_u32 v{H_E}, v{H_T+1}, 5, v{H_E}")
    A(f"s_lshl_b32 s{S_I}, s{HW}, 9")
    A(f"v_lshlrev_b32 v{H_E}, 2, v{H_E}")
    A(f"v_add_u32 v{H_E}, s{S_I}, v{H_E}")
    A(f"v_mov_b32 v{H_T}, 0")
    A(f"v_mov_b32 v{H_T+1}, {L_CNT}")
    A(f"ds_write_b32 v{H_T+1}, v{H_T}")
    A("s_waitcnt vmcnt(32)")
    xb_from_xq()
    for grp in range(8):
        A(f"s_waitcnt vmcnt({(7 - grp) * 4})")
        gemv_grp(grp)
    reduce_D(H_T, H_T + 1)
    A(f"ds_write_b32 v{H_E}, v{H_T} offset:{L_QA}")
    A(f"ds_write_b32 v{H_E}, v{H_T+1} offset:{L_QA + 16}")
    A("s_waitcnt lgkmcnt(0)")
    A("s_barrier")
    stamp(0)
    A.c("---- q_B of head hq, published to the 4 sibling workgroups")
    for _ in range(qbsleep): A("s_sleep 127")
    A(f"s_mov_b64 {sr(R_X, 2)}, {sr(P_BX, 2)}")
    A(f"s_mov_b64 {sr(R_W, 2)}, {sr(P_BWQ, 2)}")
    A(f"s_lshl_b32 s{S_BASE}, s{HW}, 20")
    A(f"s_lshl_b32 s{S_I}, s{S_HQ}, 8")
    A(f"s_add_u32 s{S_BASE}, s{S_BASE}, s{S_I}")
    zero_D()
    A(f"buffer_load_dwordx4 {vr(H_XQ, 4)}, v{H_OX}, {sr(R_X, 4)}, s{S_XO} offen")
    for grp in range(qbPD): wload_grp(grp, 8192, H_OQ, wflags)
    A(f"s_lshl_b32 s{S_I}, s{S_B}, 5")
    A(f"s_add_u32 s{S_BA}, s{P_DBG}, s{S_I}")
    A(f"s_addc_u32 s{S_BA+1}, s{P_DBG+1}, 0")
    A(f"s_lshl_b32 s{S_I}, s{S_B}, 10")
    A(f"s_add_u32 s{S_I}, s{S_I}, s{S_HQ}")
    A(f"s_lshl_b32 s{S_I}, s{S_I}, 7")
    A(f"s_add_u32 s{S_I}, s{S_I}, {W_Y}")
    A(f"v_lshrrev_b32 v{RA}, 3, v{H_LANE}")
    A(f"v_lshlrev_b32 v{RA}, 12, v{RA}")
    A(f"v_and_b32 v{H_T}, 7, v{H_LANE}")
    A(f"v_lshl_add_u32 v{RA}, v{H_T}, 4, v{RA}")
    A(f"v_add_u32 v{RA}, s{S_I}, v{RA}")
    for i in range(1, 4): A(f"v_add_u32 v{RA+i}, {i * 32768}, v{RA}")
    A(f"v_and_b32 v{RO}, 3, v{H_LANE}")
    A(f"v_bfe_u32 v{H_T}, v{H_LANE}, 4, 1")
    A(f"v_lshl_add_u32 v{RO}, v{H_T}, 3, v{RO}")
    A(f"v_bfe_u32 v{H_T}, v{H_LANE}, 3, 1")
    A(f"v_lshl_add_u32 v{RO}, v{H_T}, 2, v{RO}")
    A(f"v_bfe_u32 v{H_T}, v{H_LANE}, 2, 1")
    A(f"v_lshl_add_u32 v{RO}, v{H_T}, 9, v{RO}")
    A(f"s_lshl_b32 s{S_I}, s{S_B}, 6")
    A(f"s_add_u32 s{S_I}, s{S_I}, s{S_HQ}")
    A(f"s_lshl_b32 s{S_I}, s{S_I}, 4")
    A(f"v_add_lshl_u32 v{RO}, v{RO}, s{S_I}, 1")
    A(f"v_lshlrev_b32 v{VP}, 1, v{H_OX}")
    A(f"v_mov_b32 v{VM}, 0")
    A(f"v_mov_b32 v{VNAN}, 0x7fc07fc0")
    A(f"s_lshl_b32 s{S_I}, s{HW}, 9")
    A(f"v_add_u32 v{VS1}, s{S_I}, v{H_L16}")
    A(f"s_lshl_b32 s{S_I}, s{HW}, 5")
    A(f"v_mov_b32 v{VS2}, s{S_I}")
    A(f"s_andn2_b32 s{S_I}, s2, 3")
    A(f"s_add_u32 s{S_I}, s{S_I}, s{HW}")
    A(f"s_lshl_b32 s{S_I}, s{S_I}, 2")
    A(f"s_add_u32 s{S_I}, s{S_I}, s{S_S}")
    A(f"s_lshl_b32 s{S_I}, s{S_I}, 10")
    A(f"v_add_u32 v{VS3}, s{S_I}, v{H_L16}")
    A(f"s_mul_i32 s{S_I}, s{HW}, 640")
    A(f"v_add_u32 v{RO+1}, s{S_I}, v{H_L16}")
    A(f"s_waitcnt vmcnt({qbPD * 4})")
    xb_from_xq()
    for grp in range(8):
        A(f"s_waitcnt vmcnt({(min(qbPD, 8 - grp) - 1) * 4})")
        if grp + qbPD < 8: wload_grp(grp + qbPD, 8192, H_OQ, wflags)
        gemv_grp(grp)
    reduce_D(H_T, H_T + 1)
    A(f"ds_write_b32 v{H_E}, v{H_T} offset:{L_Q2}")
    A(f"ds_write_b32 v{H_E}, v{H_T+1} offset:{L_Q2 + 16}")
    A(f"v_mov_b32 v{H_T+2}, {L_CNT}")
    A(f"v_mov_b32 v{H_T+3}, 1")
    A("s_waitcnt lgkmcnt(0)")
    A("s_mov_b64 exec, 1")
    A(f"ds_add_rtn_u32 v{H_T+4}, v{H_T+2}, v{H_T+3}")
    A("s_mov_b64 exec, -1")
    A("s_waitcnt lgkmcnt(0)")
    A(f"v_readfirstlane_b32 s{S_T2}, v{H_T+4}")
    A(f"s_cmp_lg_u32 s{S_T2}, 3")
    A("s_cbranch_scc1 L_noq")
    A.c("the last of the 4 waves sums the partials, publishes q_B and raises the 'slots are marked' flag")
    A(f"v_lshlrev_b32 v{H_T}, 1, v{H_L16}")
    A(f"v_mov_b32 v{H_T+8}, s2")
    A("s_mov_b64 exec, 0xffff")
    for w in range(4):
        A(f"ds_read_b128 {vr(PO + 8 * w, 4)}, v{H_T} offset:{L_Q2 + w * 512}")
        A(f"ds_read_b128 {vr(PO + 8 * w + 4, 4)}, v{H_T} offset:{L_Q2 + w * 512 + 16}")
    A(f"s_lshl_b32 s{S_I}, s2, 8")
    A(f"s_add_u32 s{S_I}, s{S_I}, {W_QB}")
    A(f"v_add_u32 v{H_T+1}, s{S_I}, v{H_L16}")
    A("s_waitcnt lgkmcnt(0)")
    for i in range(0, 8, 2):
        A(f"v_pk_add_f32 {vr(PO + i, 2)}, {vr(PO + i, 2)}, {vr(PO + 8 + i, 2)}")
        A(f"v_pk_add_f32 {vr(PO + 16 + i, 2)}, {vr(PO + 16 + i, 2)}, {vr(PO + 24 + i, 2)}")
    for i in range(0, 8, 2):
        A(f"v_pk_add_f32 {vr(PO + i, 2)}, {vr(PO + i, 2)}, {vr(PO + 16 + i, 2)}")
    for i in range(4):
        A(f"v_cvt_pk_bf16_f32 v{SQ+i}, v{PO+2*i}, v{PO+2*i+1}")
    sanitize([SQ, SQ + 1, SQ + 2, SQ + 3], VNAN)
    A(f"global_store_dwordx4 v{H_T+1}, {vr(SQ, 4)}, {sr(P_WS, 2)} sc1")
    A("s_mov_b64 exec, 1")
    A(f"global_store_byte v{H_T+8}, v{H_T+3}, {sr(P_DBG, 2)} sc1")
    A("s_mov_b64 exec, -1")
    A.label("L_noq")
    stamp(14)
    wo_preload(P_AWO, S_H)
    stamp(15)
    if tlb:
        A.c("touch the pages used later (address-translation warm-up)")
        A(f"s_lshr_b32 s{S_I}, s2, 2")
        A(f"s_lshl_b32 s{S_I}, s{S_I}, 20")
        A(f"v_mov_b32 v{H_T+8}, s{S_I}")
        A(f"s_lshl_b32 s{S_I}, s{S_HQ}, 17")
        A(f"v_mov_b32 v{H_T+9}, s{S_I}")
        A(f"s_cmp_lg_u32 s{HW}, 2")
        A("s_cbranch_scc1 L_notlb")
        A("s_mov_b64 exec, 1")
        A(f"global_load_dword v{H_T+10}, v{H_T+8}, {sr(P_BK, 2)} nt")
        A(f"global_load_dword v{H_T+11}, v{H_T+8}, {sr(P_BV, 2)} nt")
        A(f"global_load_dword v{H_T+12}, v{H_T+9}, {sr(P_BWO, 2)} nt")
        A("s_mov_b64 exec, -1")
        A.label("L_notlb")
    A(f"s_cmp_lg_u32 s{HW}, 0")
    A("s_cbranch_scc1 L_qbdone")
    for _ in range(zsleep): A("s_sleep 127")
    A.c("every workgroup of this batch has marked its slots")
    A(f"s_mov_b32 s{S_I}, {spinmax}")
    A("s_branch L_z1")
    A.label("L_z")
    A(f"s_sleep {sleep}")
    A.label("L_z1")
    A(f"s_load_dwordx8 {sr(S_PV, 8)}, {sr(S_BA, 2)}, 0x0 glc")
    A(f"s_sub_u32 s{S_I}, s{S_I}, 1")
    A("s_waitcnt lgkmcnt(0)")
    A("s_cbranch_scc1 L_zx")
    A(f"s_and_b64 {sr(S_PV, 2)}, {sr(S_PV, 2)}, {sr(S_PV + 2, 2)}")
    A(f"s_and_b64 {sr(S_PV + 4, 2)}, {sr(S_PV + 4, 2)}, {sr(S_PV + 6, 2)}")
    A(f"s_and_b64 {sr(S_PV, 2)}, {sr(S_PV, 2)}, {sr(S_PV + 4, 2)}")
    A(f"s_and_b32 s{S_PV}, s{S_PV}, s{S_PV+1}")
    A(f"s_cmp_lg_u32 s{S_PV}, 0x01010101")
    A("s_cbranch_scc1 L_z")
    A.label("L_zx")
    A(f"s_andn2_b32 s{S_I}, s2, 3")
    A(f"s_lshl_b32 s{S_I}, s{S_I}, 8")
    A(f"s_add_u32 s{S_I}, s{S_I}, {W_QB}")
    A(f"v_add_u32 v{H_T+1}, s{S_I}, v{H_L16}")
    gather("q", [(PO, H_T + 1)], sleep, sleep, 0)
    A(f"ds_write_b128 v{H_L16}, {vr(PO, 4)} offset:{L_QB}")
    A.label("L_qbdone")
    A(f"s_mov_b32 s{S_PH2}, 0")
    A("s_waitcnt vmcnt(0) lgkmcnt(0)")
    stamp(1)
    A("s_barrier")
    stamp(2)
    A(f"ds_read_b128 {vr(ML, 4)}, v{VM} offset:{L_MLA}")
    A(f"ds_read_b128 {vr(ML + 4, 4)}, v{VM} offset:{L_MLA + 16}")
    for w in range(4):
        A(f"ds_read_b128 {vr(PO + 8 * w, 4)}, v{VP} offset:{L_PA + w * 512}")
        A(f"ds_read_b128 {vr(PO + 8 * w + 4, 4)}, v{VP} offset:{L_PA + w * 512 + 16}")
    A("s_waitcnt lgkmcnt(0)")
    A.label("L_project")
    A.c("---- shared by A and B: merge 4 partials, normalise, project")
    merge_factors(True)
    merge_vals(8)
    zero_D()
    for t in range(8): A(f"v_cvt_pk_bf16_f32 v{H_XB+t}, v{PO+t}, v{PO+t}")
    for grp in range(8): gemv_grp(grp)
    A("s_nop 7")
    for k, (ra, rb) in enumerate([(0, 2), (1, 3), (4, 6), (5, 7)]):
        A(f"v_add_f32_dpp v{H_T+k}, v{H_D+ra}, v{H_D+ra} row_ror:8 row_mask:0xf bank_mask:0x3")
    for k, (ra, rb) in enumerate([(0, 2), (1, 3), (4, 6), (5, 7)]):
        A(f"v_add_f32_dpp v{H_T+k}, v{H_D+rb}, v{H_D+rb} row_ror:8 row_mask:0xf bank_mask:0xc")
    A(f"s_cmp_lg_u32 s{S_PH2}, 0")
    A("s_cbranch_scc1 L_tail")
    for k in range(4):
        A(f"v_add_f32_dpp v{YS+k}, v{H_T+k}, v{H_T+k} row_shl:4 row_mask:0xf bank_mask:0x5")
    stamp(3)
    wo_preload(P_BWO, S_HQ, wotb)
    X_ALL, X_33, X_32 = 66, 68, 70
    if dry2:
        A.c("instruction-cache / TLB warm-up: wave 0 walks the final code with no lane active")
        A(f"global_load_ushort v{H_T+8}, v{RO}, {sr(P_OUT, 2)}")
        for x in (X_ALL, X_33, X_32): A(f"s_mov_b64 {sr(x + 8, 2)}, 0")
        A(f"s_cmp_lg_u32 s{HW}, 0")
        A("s_cbranch_scc1 L_dryret2")
        A("s_mov_b64 exec, 0")
        A("s_branch L_stage1")
        A.label("L_dryret2")
    if dry:
        A(f"s_cmp_lg_u32 s{HW}, 1")
        A("s_cbranch_scc1 L_dryret")
        A("s_mov_b64 exec, 0")
        A("s_branch L_finB")
        A.label("L_dryret")
    A("s_mov_b64 exec, -1")
    A(f"s_mov_b64 {sr(X_ALL + 8, 2)}, -1")
    A(f"s_mov_b32 s{X_33 + 8}, -1")
    A(f"s_mov_b32 s{X_33 + 9}, 1")
    A(f"s_mov_b32 s{X_32 + 8}, 0")
    A(f"s_mov_b32 s{X_32 + 9}, 1")
    A(f"s_mov_b32 s{S_PH2}, 1")
    A("s_waitcnt vmcnt(0)")
    stamp(13)
    A("s_barrier")
    A.label("L_stage1")
    A.c("---- B stage 1: merge head hw over the 4 streamer waves, publish (o[128], m, l)")
    A(f"ds_read_b128 {vr(ML, 4)}, v{VS2} offset:{L_MLB}")
    A(f"ds_read_b128 {vr(ML + 4, 4)}, v{VS2} offset:{L_MLB + 16}")
    for w in range(4):
        A(f"ds_read_b128 {vr(PO + 4 * w, 4)}, v{VS1} offset:{L_PB + w * 2048}")
    stamp(4)
    A("s_waitcnt lgkmcnt(0)")
    merge_factors(False)
    merge_vals(4)
    A(f"s_mov_b64 exec, {sr(X_32 + 8, 2)}")
    A(f"v_mov_b32 v{PO}, v{MM}")
    A(f"v_mov_b32 v{PO+1}, v{LL}")
    A(f"s_mov_b64 exec, {sr(X_33 + 8, 2)}")
    sanitize([PO, PO + 1, PO + 2, PO + 3], VNAN)
    A(f"global_store_dwordx4 v{VSL}, {vr(PO, 4)}, {sr(P_WS, 2)} sc1")
    stamp(8)
    gather("p", [(PO + 4, VS3)], ppl[0], ppl[1], 64)
    A(f"ds_write_b128 v{RO+1}, {vr(PO + 4, 4)} offset:{L_P2}")
    A(f"s_mov_b64 exec, {sr(X_ALL + 8, 2)}")
    A("s_waitcnt lgkmcnt(0)")
    stamp(9)
    A("s_cbranch_execz L_nobar")
    A("s_barrier")
    A.label("L_nobar")
    for p in range(4):
        A(f"ds_read_b64 {vr(H_B + 2 * p, 2)}, v{VM} offset:{L_P2 + p * 640 + 512}")
    for p in range(4):
        A(f"ds_read_b128 {vr(PO + 8 * p, 4)}, v{VP} offset:{L_P2 + p * 640}")
        A(f"ds_read_b128 {vr(PO + 8 * p + 4, 4)}, v{VP} offset:{L_P2 + p * 640 + 16}")
    A("s_waitcnt lgkmcnt(8)")
    for p in range(4):
        A(f"v_mov_b32 v{ML+p}, v{H_B+2*p}")
        A(f"v_mov_b32 v{ML+4+p}, v{H_B+2*p+1}")
    A("s_waitcnt lgkmcnt(0)")
    A("s_cbranch_execnz L_project")
    A.label("L_tail")
    for k in range(4):
        A(f"v_add_f32_dpp v{YS+k}, v{H_T+k}, v{H_T+k} row_shr:4 row_mask:0xf bank_mask:0xa")
    sanitize([YS, YS + 1, YS + 2, YS + 3], VNAN)
    A(f"global_store_dwordx4 v{VY}, {vr(YS, 4)}, {sr(P_WS, 2)} sc1")
    stamp(5)
    A(f"s_cmp_lg_u32 s{HW}, 0")
    A("s_cbranch_scc1 L_fin")
    gather("y", [(PO + 4 * i, RA + i) for i in range(4)], psl[0], psl[1], psl[2])
    stamp(6)
    for i in (0, 2):
        A(f"v_pk_add_f32 {vr(PO + i, 2)}, {vr(PO + i, 2)}, {vr(PO + 4 + i, 2)}")
        A(f"v_pk_add_f32 {vr(PO + 8 + i, 2)}, {vr(PO + 8 + i, 2)}, {vr(PO + 12 + i, 2)}")
    for i in (0, 2):
        A(f"v_pk_add_f32 {vr(PO + i, 2)}, {vr(PO + i, 2)}, {vr(PO + 8 + i, 2)}")
    A("s_nop 0")
    A(f"v_add_f32_dpp v{H_T}, v{PO}, v{PO} row_ror:8 row_mask:0xf bank_mask:0x3")
    A(f"v_add_f32_dpp v{H_T+1}, v{PO+1}, v{PO+1} row_ror:8 row_mask:0xf bank_mask:0x3")
    A(f"v_add_f32_dpp v{H_T}, v{PO+2}, v{PO+2} row_ror:8 row_mask:0xf bank_mask:0xc")
    A(f"v_add_f32_dpp v{H_T+1}, v{PO+3}, v{PO+3} row_ror:8 row_mask:0xf bank_mask:0xc")
    A("s_nop 1")
    A(f"v_permlane16_swap_b32 v{H_T}, v{H_T+1}")
    A(f"v_add_f32 v{H_T}, v{H_T}, v{H_T+1}")
    A(f"v_mov_b32 v{H_T+1}, v{H_T}")
    A("s_nop 1")
    A(f"v_permlane32_swap_b32 v{H_T}, v{H_T+1}")
    A(f"v_add_f32 v{H_T}, v{H_T}, v{H_T+1}")
    A(f"v_cvt_pk_bf16_f32 v{H_T}, v{H_T}, v{H_T}")
    A("s_mov_b32 exec_hi, 0")
    if dry2: A("s_cbranch_execz L_dryret2")
    A(f"global_store_short v{RO}, v{H_T}, {sr(P_OUT, 2)} {outf}")
    if ts:
        A("s_waitcnt vmcnt(0)")
        stamp(7)
    A.label("L_fin")
    flush_stamps(True)
    A.label("L_end")
    A("s_endpgm")
    A.L += ['.section .rodata,"a"', ".p2align 6", f".amdhsa_kernel {NAME}",
            "  .amdhsa_next_free_vgpr 256", f"  .amdhsa_next_free_sgpr {96 if ts else 80}", "  .amdhsa_accum_offset 256",
            "  .amdhsa_group_segment_fixed_size 0", "  .amdhsa_kernarg_size 104", "  .amdhsa_user_sgpr_count 2",
            "  .amdhsa_user_sgpr_kernarg_segment_ptr 1", "  .amdhsa_system_sgpr_workgroup_id_x 1",
            "  .amdhsa_float_denorm_mode_32 3", ".end_amdhsa_kernel"]
    return A.text()

if __name__ == "__main__":
    out = sys.argv[1] if len(sys.argv) > 1 else "concat_heads__mha_block_cached__gqa_block_cached__decode.s"
    kw = {}
    for a in sys.argv[2:]:
        k, v = a.split("=", 1)
        try: v = int(v)
        except ValueError:
            if v.startswith("("): v = eval(v)
        kw[k] = v
    open(out, "w").write(gen(**kw))
```

```python
import sys, math, struct
NAME = "concat_heads__mha_block_cached__gqa_block_cached__decode_kernel"

HEADER = """\
"""

def f32bits(x):
    return struct.unpack("<I", struct.pack("<f", x))[0]

class Asm:
    def __init__(self):
        self.L = []
    def __call__(self, s):
        self.L.append("  " + s.rstrip())
    def label(self, s):
        self.L.append(s + ":")
    def c(self, s):
        self.L.append("  ; " + s)
    def text(self):
        return "\n".join(self.L) + "\n"

def vr(b, n=1):
    return f"v{b}" if n == 1 else f"v[{b}:{b+n-1}]"
def sr(b, n=1):
    return f"s{b}" if n == 1 else f"s[{b}:{b+n-1}]"

L_QA = 0
L_QB = 2048
L_PA = 3072
L_MLA = 5120
L_MLB = 5184
L_CNT = 5376
L_Q2 = 5632
L_PB = 8192
L_P2 = 16384
L_OS = 19456
L_WO = 20480
LDS_BYTES = 20480 + 131072
W_PB = 0
W_Y = 1 << 20
W_QB = 2 << 20
W_TS = 4 << 20

def gen(D=3, PT=8, PRE=2, kvflags="nt", wflags="", qbPD=4, ts=0, sleep=48, dry=1, now=0, nox=0, dyn=1,
        spinmax=1 << 16, psl=(8, 1, 16), ppl=(16, 1, 8), hprio=3, zsleep=4, wot=4, qbsleep=0, xr=0, dbgts=0, remap=2, fine=2, dry2=1, rot=0, xm=0, wotb=12, tlb=1, outf="", fB=None, fAK=None, fAV=None, barit=8):
    RB, PP = 4, 2
    assert D <= RB - 1 and PT % 4 == 0 and (PT + D) * 4 <= 60
    A = Asm()
    A.L.append(HEADER.rstrip("\n"))
    A.L.append(f"; @launch grid=(256,1,1) block=(512,1,1) lds={LDS_BYTES}")
    A.L += ['.amdgcn_target "amdgcn-amd-amdhsa--gfx950"', ".text", f".globl {NAME}", ".p2align 8",
            f".type {NAME},@function", f"{NAME}:"]
    P_AX, P_AK, P_AV, P_AWQ, P_AWO, P_BX, P_BK, P_BV, P_BWQ, P_BWO, P_OUT, P_DBG, P_WS = [4 + 2 * i for i in range(13)]
    A("s_cmp_ge_u32 s2, 256")
    A("s_cbranch_scc1 L_end")
    if xr: A(f"s_xor_b32 s2, s2, {xr}")
    S_S, S_HQ, S_B, S_H = 30, 31, 60, 61
    def do_remap():
        A.c("siblings (wg & ~3 after the remap) sit on XCDs {0,3,5,6} or {1,2,4,7} under round-robin placement (speed only)")
        A("s_lshr_b32 s3, s2, 1")
        A("s_xor_b32 s3, s3, s2")
        A("s_and_b32 s3, s3, 1")
        A("s_lshl_b32 s3, s3, 2")
        A("s_xor_b32 s2, s2, s3")
    A("s_load_dwordx16 s[4:19], s[0:1], 0")
    A("s_load_dwordx8 s[20:27], s[0:1], 64")
    A("s_load_dwordx2 s[28:29], s[0:1], 96")
    A("v_lshrrev_b32 v1, 6, v0")
    A("v_and_b32 v2, 63, v0")
    if remap == 1: do_remap()
    A(f"s_and_b32 s{S_H}, s2, 7")
    A(f"s_lshl_b32 s{S_H}, s{S_H}, 2")
    A(f"s_bfe_u32 s{S_S}, s2, 0x20003")
    A(f"s_add_u32 s{S_H}, s{S_H}, s{S_S}")
    if remap == 2: do_remap()
    A("v_readfirstlane_b32 s3, v1")
    A(f"s_and_b32 s{S_S}, s2, 3")
    A(f"s_and_b32 s{S_HQ}, s2, 31")
    A(f"s_lshr_b32 s{S_B}, s2, 5")
    if ts:
        for i in range(16): A(f"s_mov_b32 s{80 + i}, 0")
    A("s_cmp_ge_u32 s3, 4")
    A("s_cbranch_scc1 L_helper")

    inhelper = [False]
    def stamp(slot):
        if not ts: return
        if dbgts and (not inhelper[0] or slot not in (0, 2, 4, 7, 10)): return
        A("s_memrealtime s[58:59]")
        A("s_waitcnt lgkmcnt(0)")
        A(f"s_mov_b32 s{80 + slot}, s58")
    def flush_stamps(helper=False):
        if not ts: return
        if dbgts:
            if not helper: return
            A("s_cmp_lg_u32 s3, 4")
            A("s_cbranch_scc1 L_end")
            A("s_cmp_ge_u32 s2, 4")
            A("s_cbranch_scc1 L_end")
            A("s_mov_b64 exec, 1")
            for i, sl in enumerate((0, 2, 4, 7)):
                A(f"s_sub_u32 s72, s{80 + sl}, s90")
                A(f"v_mov_b32 v{8 + i}, s72")
            A("s_lshl_b32 s72, s2, 4")
            A("v_mov_b32 v12, s72")
            A(f"global_store_dwordx4 v12, v[8:11], s[{P_DBG}:{P_DBG+1}]")
            return
        A("s_mov_b64 exec, -1")
        A("v_mov_b32 v9, 0")
        for i in range(16): A(f"v_writelane_b32 v9, s{80 + i}, {i}")
        A("s_lshl_b32 s72, s2, 3")
        A("s_add_u32 s72, s72, s3")
        A("s_lshl_b32 s72, s72, 6")
        A(f"s_add_u32 s72, s72, {W_TS}")
        A("v_lshlrev_b32 v8, 2, v2")
        A("v_add_u32 v8, s72, v8")
        A("s_mov_b64 exec, 0xffff")
        A(f"global_store_dword v8, v9, s[{P_WS}:{P_WS+1}]")

    def build_masks(MA, vj, vt):
        A(f"v_and_b32 v{vt}, 1, v{vj}")
        A(f"v_cmp_eq_u32 vcc, 1, v{vt}")
        A(f"v_mov_b32 v{vt}, 0xffff")
        A(f"v_mov_b32 v{vt+1}, 0xffff0000")
        A(f"v_cndmask_b32 v{vt}, v{vt}, v{vt+1}, vcc")
        A(f"v_bfe_u32 v{vt+1}, v{vj}, 1, 3")
        for k in range(8):
            A(f"v_cmp_eq_u32 vcc, {k}, v{vt+1}")
            A("s_nop 1")
            A(f"v_cndmask_b32 v{MA+k}, 0, v{vt}, vcc")

    def bank_reduce(src, dst, Ta, Tb):
        A(f"v_add_f32_dpp v{Ta}, v{src[0]}, v{src[0]} row_ror:8 row_mask:0xf bank_mask:0x3")
        A(f"v_add_f32_dpp v{Tb}, v{src[1]}, v{src[1]} row_ror:8 row_mask:0xf bank_mask:0x3")
        A(f"v_add_f32_dpp v{Ta}, v{src[2]}, v{src[2]} row_ror:8 row_mask:0xf bank_mask:0xc")
        A(f"v_add_f32_dpp v{Tb}, v{src[3]}, v{src[3]} row_ror:8 row_mask:0xf bank_mask:0xc")
        A("s_nop 0")
        A(f"v_add_f32_dpp v{dst}, v{Ta}, v{Ta} row_shl:4 row_mask:0xf bank_mask:0x5")
        A(f"v_add_f32_dpp v{dst}, v{Tb}, v{Tb} row_shr:4 row_mask:0xf bank_mask:0xa")

    V_OFF, V_LANE, VADDR = 1, 2, 3
    QA, MA = 4, 8
    M_A, L_A, T1, T2, MN, VML, AL, PPv, VPA, VPB, VMB = 16, 17, 18, 19, 20, 21, 22, 24, 28, 29, 30
    DA, SS, TT, UU, BOP = 32, 40, 44, 52, 56
    RING = 64
    TMP = 128
    QB, DB, MB, M_B, L_B, SB = 128, 144, 152, 154, 155, 156
    assert TMP + PT * 16 <= 256
    SK, SV = 32, 36
    S_OFF, S_CNT, S_T, S_C, S_OFFB, S_CL, S_CA = 40, 41, 42, 43, 44, 45, 46

    def breg(t):
        return TMP + t * 16 if t < PT else RING + ((t - PT) % RB) * 16
    def issue(base, isV, pair):
        s = SV if isV else SK
        if pair == 0:
            so = f"s{S_OFF}"
        else:
            A(f"s_add_u32 s{S_T}, s{S_OFF}, {pair * 16384}")
            so = f"s{S_T}"
        for j in range(4):
            A(f"buffer_load_dwordx4 {vr(base + 4 * j, 4)}, v{V_OFF}, {sr(s, 4)}, {so} offen offset:{j * 1024} {(kvflags if fAV is None else fAV) if isV else (kvflags if fAK is None else fAK)}")

    A.c("---------------- streamer ----------------")
    A(f"v_lshlrev_b32 v{V_OFF}, 4, v0")
    A(f"s_mul_i32 s{S_T}, s3, 3072")
    A(f"v_add_u32 v{V_OFF}, s{S_T}, v{V_OFF}")
    A(f"s_lshl_b32 s{S_OFF}, s{S_B}, 5")
    A(f"s_add_u32 s{S_OFF}, s{S_OFF}, s{S_H}")
    A(f"s_lshl_b32 s{S_OFF}, s{S_OFF}, 20")
    A(f"s_mov_b32 s{SK+2}, {256 << 20}")
    A(f"s_mov_b32 s{SK+3}, 0x00020000")
    A(f"s_mov_b32 s{SV+2}, {256 << 20}")
    A(f"s_mov_b32 s{SV+3}, 0x00020000")
    A("s_waitcnt lgkmcnt(0)")
    A(f"s_mov_b64 {sr(SK, 2)}, {sr(P_AK, 2)}")
    A(f"s_mov_b64 {sr(SV, 2)}, {sr(P_AV, 2)}")
    stamp(6)
    for t in range(PT + D):
        if t == PRE: A("s_barrier")
        issue(breg(t), t & 1, t // 2)
    stamp(4)
    A(f"s_add_u32 s{S_OFF}, s{S_OFF}, {PT // 2 * 16384}")
    A(f"s_lshr_b32 s{S_OFFB}, s2, 2")
    A(f"s_lshl_b32 s{S_OFFB}, s{S_OFFB}, 20")
    A(f"s_andn2_b32 s{S_T}, s2, 3")
    A(f"s_lshl_b32 s{S_T}, s{S_T}, 2")
    A(f"s_lshl_b32 s{S_T}, s{S_T}, 10")
    A(f"s_add_u32 s{S_CA}, s{P_WS}, s{S_T}")
    A(f"s_addc_u32 s{S_CA+1}, s{P_WS+1}, 0")
    A(f"s_mov_b32 s{S_C}, {f32bits(math.log2(math.e) / math.sqrt(128.0)):#x}")
    build_masks(MA, V_LANE, T1)
    A(f"v_mov_b32 v{M_A}, 0xff800000")
    A(f"v_mov_b32 v{L_A}, 0")
    A(f"v_and_b32 v{VADDR}, 15, v{V_LANE}")
    A(f"v_lshlrev_b32 v{VADDR}, 5, v{VADDR}")
    A(f"v_bfe_u32 v{SS}, v{V_LANE}, 2, 2")
    A(f"v_lshrrev_b32 v{SS+1}, 4, v{V_LANE}")
    A(f"v_and_b32 v{SS+2}, 3, v{V_LANE}")
    A(f"v_lshlrev_b32 v{SS+1}, 7, v{SS+1}")
    A(f"v_lshl_add_u32 v{SS+1}, v{SS+2}, 2, v{SS+1}")
    A(f"v_lshl_add_u32 v{VPA}, v{SS}, 5, v{SS+1}")
    A(f"v_lshl_add_u32 v{VPB}, v{SS}, 9, v{SS+1}")
    A(f"s_lshl_b32 s{S_T}, s3, 9")
    A(f"v_add_u32 v{VPA}, s{S_T}, v{VPA}")
    A(f"s_lshl_b32 s{S_T}, s3, 11")
    A(f"v_add_u32 v{VPB}, s{S_T}, v{VPB}")
    A(f"s_lshl_b32 s{S_T}, s3, 2")
    A(f"v_mov_b32 v{VML}, s{S_T}")
    A(f"v_lshl_add_u32 v{VMB}, v{SS}, 5, v{VML}")
    A("s_barrier")
    Q0 = 32
    for w in range(4):
        A(f"ds_read_b128 {vr(Q0 + 8 * w, 4)}, v{VADDR} offset:{L_QA + w * 512}")
        A(f"ds_read_b128 {vr(Q0 + 8 * w + 4, 4)}, v{VADDR} offset:{L_QA + w * 512 + 16}")
    A("s_waitcnt lgkmcnt(0)")
    for i in range(0, 8, 2):
        A(f"v_pk_add_f32 {vr(Q0 + i, 2)}, {vr(Q0 + i, 2)}, {vr(Q0 + 8 + i, 2)}")
        A(f"v_pk_add_f32 {vr(Q0 + 16 + i, 2)}, {vr(Q0 + 16 + i, 2)}, {vr(Q0 + 24 + i, 2)}")
    for i in range(0, 8, 2):
        A(f"v_pk_add_f32 {vr(Q0 + i, 2)}, {vr(Q0 + i, 2)}, {vr(Q0 + 16 + i, 2)}")
    for i in range(4):
        A(f"v_cvt_pk_bf16_f32 v{QA+i}, v{Q0+2*i}, v{Q0+2*i+1}")
    for r in range(DA, DA + 8):
        A(f"v_mov_b32 v{r}, 0")
    stamp(0)
    if ts: A("s_getreg_b32 s85, hwreg(HW_REG_XCC_ID)")

    def softmax_tail(S, M, Lr, Dd):
        A("s_nop 1")
        A(f"v_permlane16_swap_b32 v{T1}, v{T2}")
        A(f"v_max_f32 v{T1}, v{T1}, v{T2}")
        A(f"v_mov_b32 v{T2}, v{T1}")
        A("s_nop 1")
        A(f"v_permlane32_swap_b32 v{T1}, v{T2}")
        A(f"v_max3_f32 v{MN}, v{T1}, v{T2}, v{M}")
        A(f"v_sub_f32 v{AL}, v{M}, v{MN}")
        for i, s in enumerate(S):
            A(f"v_sub_f32 v{PPv+i}, v{s}, v{MN}")
        A(f"v_exp_f32 v{AL}, v{AL}")
        for i in range(len(S)):
            A(f"v_exp_f32 v{PPv+i}, v{PPv+i}")
        A(f"v_mov_b32 v{M}, v{MN}")
        A(f"v_fma_f32 v{Lr}, v{Lr}, v{AL}, v{PPv}")
        for i in range(4):
            A(f"v_pk_mul_f32 {vr(Dd + 2 * i, 2)}, {vr(Dd + 2 * i, 2)}, {vr(AL, 2)} op_sel_hi:[1,0]")
        for i in range(1, len(S)):
            A(f"v_add_f32 v{Lr}, v{Lr}, v{PPv+i}")
    def qk_A(kb):
        for i in range(4):
            for u in range(4):
                if i == 0: A(f"v_dot2_f32_bf16 v{SS+u}, v{kb+4*u}, v{QA}, 0")
                else: A(f"v_dot2c_f32_bf16 v{SS+u}, v{kb+4*u+i}, v{QA+i}")
        bank_reduce([SS, SS + 1, SS + 2, SS + 3], UU, TT, TT + 1)
        A("s_nop 1")
        A(f"v_add_f32_dpp v{UU}, v{UU}, v{UU} quad_perm:[1,0,3,2] row_mask:0xf bank_mask:0xf")
        A("s_nop 1")
        A(f"v_add_f32_dpp v{UU}, v{UU}, v{UU} quad_perm:[2,3,0,1] row_mask:0xf bank_mask:0xf")
        A(f"v_mul_f32 v{SS}, s{S_C}, v{UU}")
        A(f"v_mul_f32 v{T1}, s{S_C}, v{UU}")
        A(f"v_mul_f32 v{T2}, s{S_C}, v{UU}")
        softmax_tail([SS], M_A, L_A, DA)
        A(f"v_cvt_pk_bf16_f32 v{T1}, v{PPv}, v{PPv}")
        for k in range(8):
            A(f"v_and_b32 v{BOP+k}, v{T1}, v{MA+k}")
    def pv(vb, Dd):
        for u in range(4):
            A(f"v_mfma_f32_16x16x16_bf16 {vr(Dd, 4)}, {vr(vb + 4 * u, 2)}, {vr(BOP + 2 * u, 2)}, {vr(Dd, 4)}")
            A(f"v_mfma_f32_16x16x16_bf16 {vr(Dd + 4, 4)}, {vr(vb + 4 * u + 2, 2)}, {vr(BOP + 2 * u, 2)}, {vr(Dd + 4, 4)}")
    def qk_B(kb):
        for u in range(4):
            for i in range(4):
                for h in range(4):
                    if i == 0: A(f"v_dot2_f32_bf16 v{SB+4*u+h}, v{kb+4*u}, v{QB+4*h}, 0")
                    else: A(f"v_dot2c_f32_bf16 v{SB+4*u+h}, v{kb+4*u+i}, v{QB+4*h+i}")
        for u in range(4):
            s = SB + 4 * u
            A(f"v_add_f32_dpp v{TT+2*u}, v{s}, v{s} row_ror:8 row_mask:0xf bank_mask:0x3")
            A(f"v_add_f32_dpp v{TT+2*u+1}, v{s+1}, v{s+1} row_ror:8 row_mask:0xf bank_mask:0x3")
            A(f"v_add_f32_dpp v{TT+2*u}, v{s+2}, v{s+2} row_ror:8 row_mask:0xf bank_mask:0xc")
            A(f"v_add_f32_dpp v{TT+2*u+1}, v{s+3}, v{s+3} row_ror:8 row_mask:0xf bank_mask:0xc")
        for u in range(4):
            A(f"v_add_f32_dpp v{UU+u}, v{TT+2*u}, v{TT+2*u} row_shl:4 row_mask:0xf bank_mask:0x5")
        for u in range(4):
            A(f"v_add_f32_dpp v{UU+u}, v{TT+2*u+1}, v{TT+2*u+1} row_shr:4 row_mask:0xf bank_mask:0xa")
        for u in range(4):
            A(f"v_add_f32_dpp v{UU+u}, v{UU+u}, v{UU+u} quad_perm:[1,0,3,2] row_mask:0xf bank_mask:0xf")
        for u in range(4):
            A(f"v_add_f32_dpp v{UU+u}, v{UU+u}, v{UU+u} quad_perm:[2,3,0,1] row_mask:0xf bank_mask:0xf")
        for u in range(4):
            A(f"v_mul_f32 v{SS+u}, s{S_C}, v{UU+u}")
        A(f"v_max3_f32 v{T1}, v{SS}, v{SS+1}, v{SS+2}")
        A(f"v_max_f32 v{T1}, v{T1}, v{SS+3}")
        A(f"v_mov_b32 v{T2}, v{T1}")
        softmax_tail([SS, SS + 1, SS + 2, SS + 3], M_B, L_B, DB)
        for u in range(4):
            A(f"v_cvt_pk_bf16_f32 v{SS+u}, v{PPv+u}, v{PPv+u}")
        for u in range(4):
            A(f"v_and_b32 v{BOP+2*u}, v{SS+u}, v{MB}")
            A(f"v_and_b32 v{BOP+2*u+1}, v{SS+u}, v{MB+1}")

    for t in range(PT):
        A(f"s_waitcnt vmcnt({(PT + D - 1 - t) * 4})")
        if t & 1:
            A("s_nop 0")
            pv(breg(t), DA)
        else:
            qk_A(breg(t))
    A(f"s_mov_b32 s{S_CNT}, {(64 - PT // 2) // PP - 1}")

    S_O, S_CH = 48, 50
    def issue_at(base, isV, sreg):
        s = SV if isV else SK
        for j in range(4):
            A(f"buffer_load_dwordx4 {vr(base + 4 * j, 4)}, v{V_OFF}, {sr(s, 4)}, s{sreg} offen offset:{j * 1024} {kvflags if fB is None else fB}")
    def claim():
        A(f"s_mov_b32 s{S_CL}, 1")
        A(f"s_atomic_add s{S_CL}, {sr(S_CA, 2)}, 640 glc")
    def dyn_step(t, tag, qk, Dd):
        A(f"s_waitcnt vmcnt({(D - 1) * 4})")
        ti = (t + D) % RB
        p = ti // 2
        if t & 1:
            A("s_waitcnt lgkmcnt(0)")
            A(f"s_add_u32 s{S_CH+p}, s{S_CL}, 1")
            A(f"s_cmp_lt_u32 s{S_CH+p}, 256")
            A(f"s_cbranch_scc1 L_more{tag}{t}")
            A(f"s_mov_b32 s{SK+2}, 0")
            A(f"s_mov_b32 s{SV+2}, 0")
            A(f"s_branch L_ns{tag}{t}")
            A.label(f"L_more{tag}{t}")
            A(f"s_lshl_b32 s{S_O+p}, s{S_CH+p}, 12")
            A(f"s_add_u32 s{S_O+p}, s{S_O+p}, s{S_OFFB}")
            claim()
            if ts: A("s_add_u32 s87, s87, 1")
            A.label(f"L_ns{tag}{t}")
        if tag == "A" and t == 0:
            issue(RING + ti * 16, 1, 1)
            A(f"s_mov_b64 {sr(SK, 2)}, {sr(P_BK, 2)}")
            A(f"s_mov_b64 {sr(SV, 2)}, {sr(P_BV, 2)}")
            A(f"s_mov_b32 s{SK+2}, {64 << 20}")
            A(f"s_mov_b32 s{SV+2}, {64 << 20}")
            A(f"v_lshlrev_b32 v{V_OFF}, 4, v{V_LANE}")
        else:
            issue_at(RING + ti * 16, ti & 1, S_O + p)
        if t & 1: pv(RING + t * 16, Dd)
        else: qk(RING + t * 16)
    assert D == 3
    A.label("L_loopA")
    for t in range(RB):
        A(f"s_waitcnt vmcnt({(D - 1) * 4})")
        ti = t + D
        if ti == RB:
            A(f"s_add_u32 s{S_OFF}, s{S_OFF}, {PP * 16384}")
            A(f"s_cmp_lg_u32 s{S_CNT}, {barit}")
            A("s_cbranch_scc1 L_nb")
            A("s_barrier")
            A.label("L_nb")
            A(f"s_cmp_lg_u32 s{S_CNT}, 1")
            A("s_cbranch_scc1 L_nsA")
            claim()
            A.label("L_nsA")
        issue(RING + (ti % RB) * 16, ti & 1, (ti % RB) // 2)
        if t & 1: pv(RING + t * 16, DA)
        else: qk_A(RING + t * 16)
    A(f"s_sub_u32 s{S_CNT}, s{S_CNT}, 1")
    A(f"s_cmp_lg_u32 s{S_CNT}, 0")
    A("s_cbranch_scc1 L_loopA")
    for t in range(RB): dyn_step(t, "A", qk_A, DA)
    A.c("---- end of A: merge the 4 banks, partial to LDS")
    stamp(2)
    A(f"v_max_f32_dpp v{T1}, v{M_A}, v{M_A} row_ror:4 row_mask:0xf bank_mask:0xf")
    A(f"v_or_b32 v{MB}, v{MA}, v{MA+2}")
    A(f"v_or_b32 v{MB+1}, v{MA+1}, v{MA+3}")
    A(f"v_max_f32_dpp v{T1}, v{T1}, v{T1} row_ror:8 row_mask:0xf bank_mask:0xf")
    A(f"v_sub_f32 v{AL}, v{M_A}, v{T1}")
    A(f"v_exp_f32 v{AL}, v{AL}")
    A(f"ds_write_b32 v{VML}, v{T1} offset:{L_MLA}")
    A(f"v_mul_f32 v{L_A}, v{L_A}, v{AL}")
    for i in range(4):
        A(f"v_pk_mul_f32 {vr(DA + 2 * i, 2)}, {vr(DA + 2 * i, 2)}, {vr(AL, 2)} op_sel_hi:[1,0]")
    A(f"v_add_f32_dpp v{L_A}, v{L_A}, v{L_A} row_ror:4 row_mask:0xf bank_mask:0xf")
    bank_reduce([DA, DA + 1, DA + 2, DA + 3], UU, TT, TT + 1)
    A(f"v_add_f32_dpp v{L_A}, v{L_A}, v{L_A} row_ror:8 row_mask:0xf bank_mask:0xf")
    A(f"ds_write_b32 v{VPA}, v{UU} offset:{L_PA}")
    A(f"v_mov_b32 v{T2}, v{L_A}")
    bank_reduce([DA + 4, DA + 5, DA + 6, DA + 7], UU + 1, TT + 2, TT + 3)
    A(f"v_permlane16_swap_b32 v{L_A}, v{T2}")
    A(f"ds_write_b32 v{VPA}, v{UU+1} offset:{L_PA + 16}")
    A(f"v_add_f32 v{L_A}, v{L_A}, v{T2}")
    A(f"v_mov_b32 v{T2}, v{L_A}")
    A(f"v_or3_b32 v{MB}, v{MB}, v{MA+4}, v{MA+6}")
    A(f"v_or3_b32 v{MB+1}, v{MB+1}, v{MA+5}, v{MA+7}")
    A(f"v_permlane32_swap_b32 v{L_A}, v{T2}")
    A(f"v_add_f32 v{L_A}, v{L_A}, v{T2}")
    A(f"ds_write_b32 v{VML}, v{L_A} offset:{L_MLA + 16}")
    A(f"v_lshrrev_b32 v{T1}, 1, v{VADDR}")
    A(f"v_mov_b32 v{M_B}, 0xff7fffff")
    for r in [L_B] + list(range(DB, DB + 8)):
        A(f"v_mov_b32 v{r}, 0")
    A("s_waitcnt lgkmcnt(0)")
    A("s_barrier")
    for h in range(4):
        A(f"ds_read_b128 {vr(QB + 4 * h, 4)}, v{T1} offset:{L_QB + h * 256}")
    A("s_waitcnt lgkmcnt(0)")
    stamp(3)
    A(f"s_cmp_lt_u32 s{S_CH}, 256")
    A("s_cbranch_scc0 L_finB")
    A.label("L_loopB")
    for t in range(RB):
        dyn_step(t, "B", qk_B, DB)
        if t & 1:
            A(f"s_cmp_lt_u32 s{S_CH + (1 if t == 1 else 0)}, 256")
            A("s_cbranch_scc0 L_finB" if t == 1 else "s_cbranch_scc1 L_loopB")
    A.label("L_finB")
    A.c("---- end of B: partials to LDS")
    A(f"v_mov_b32 v{T1}, v{L_B}")
    A(f"v_mov_b32 v{T2}, v{L_B}")
    A(f"ds_write_b32 v{VMB}, v{M_B} offset:{L_MLB}")
    A("s_nop 0")
    A(f"v_permlane16_swap_b32 v{T1}, v{T2}")
    A(f"v_add_f32 v{T1}, v{T1}, v{T2}")
    A(f"v_mov_b32 v{T2}, v{T1}")
    for r in range(4):
        A(f"ds_write_b32 v{VPB}, v{DB+r} offset:{L_PB + r * 32}")
        A(f"ds_write_b32 v{VPB}, v{DB+4+r} offset:{L_PB + r * 32 + 16}")
    A(f"v_permlane32_swap_b32 v{T1}, v{T2}")
    A(f"v_add_f32 v{T1}, v{T1}, v{T2}")
    A(f"ds_write_b32 v{VMB}, v{T1} offset:{L_MLB + 16}")
    A("s_waitcnt lgkmcnt(0)")
    if dry: A("s_cbranch_execz L_dryret")
    stamp(8)
    A("s_barrier")
    flush_stamps()
    A("s_endpgm")

    A.label("L_helper")
    inhelper[0] = True
    A.c("---------------- helper ----------------")
    HW = 62
    H_OQ, H_LANE, H_OO, H_OX, H_E, H_L16 = 1, 2, 3, 4, 6, 7
    H_MA, H_XQ, H_XB, H_D, H_B, H_T = 8, 108, 20, 28, 36, 44
    ML, F = H_T + 8, H_T + 16
    MM, LL = H_T + 20, H_T + 21
    PO = H_T + 24
    VP, VS1, VM, VY, VNAN, VS2, VS3, VSL = 100, 101, 102, 103, 104, 105, 16, 17
    RA, RO = 120, 124
    VD, VT, VOW, VOR, DD, AO = 126, 20, 3, 5, 68, 28
    YS, SQ = 112, 116
    W0 = 128
    R_X, R_W = 32, 36
    S_SEL0, S_SEL1, S_BASE, S_T2, S_I, S_PH2, S_XO, S_SL = 40, 41, 53, 43, 44, 45, 46, 49
    S_BA, S_PV = 54, 64
    if hprio: A(f"s_setprio {hprio}")
    if dbgts: stamp(10)
    A(f"s_sub_u32 s{HW}, s3, 4")
    A(f"v_lshlrev_b32 v{H_L16}, 4, v{H_LANE}")
    A(f"s_lshl_b32 s{S_SL}, s2, 2")
    A(f"s_add_u32 s{S_SL}, s{S_SL}, s{HW}")
    A(f"s_lshl_b32 s{S_SL}, s{S_SL}, 10")
    A(f"v_add_u32 v{VSL}, s{S_SL}, v{H_L16}")
    A(f"v_add_u32 v{VY}, {W_Y}, v{VSL}")
    A(f"s_lshr_b32 s{S_I}, s{S_SL}, 4")
    A(f"s_add_u32 s{S_I}, s{S_I}, {W_QB - 960}")
    A(f"v_add_u32 v{H_T+9}, s{S_I}, v{H_L16}")
    A(f"v_cmp_gt_u32 vcc, 60, v{H_LANE}")
    for i in range(4): A(f"v_mov_b32 v{SQ+i}, -1")
    A(f"v_cndmask_b32 v{H_T+9}, v{H_T+9}, v{VSL}, vcc")
    A(f"v_lshrrev_b32 v{H_OX}, 2, v{H_LANE}")
    A(f"v_lshlrev_b32 v{H_OX}, 4, v{H_OX}")
    A(f"v_and_b32 v{H_T}, 15, v{H_LANE}")
    A(f"v_lshlrev_b32 v{H_T}, 4, v{H_T}")
    A(f"v_lshrrev_b32 v{H_T+1}, 4, v{H_LANE}")
    A(f"v_lshl_add_u32 v{H_OQ}, v{H_T+1}, 18, v{H_T}")
    A(f"s_mov_b32 s{R_X+2}, 8192")
    A(f"s_mov_b32 s{R_X+3}, 0x00020000")
    A(f"s_mov_b32 s{R_W+2}, {0 if now else 4 << 20}")
    A(f"s_mov_b32 s{R_W+3}, 0x00020000")
    A(f"s_lshl_b32 s{S_XO}, s{S_B}, 10")
    A(f"s_lshl_b32 s{S_I}, s{HW}, 8")
    A(f"s_add_u32 s{S_XO}, s{S_XO}, s{S_I}")
    A(f"s_lshl_b32 s{S_BASE}, s{HW}, 20")
    A(f"s_lshl_b32 s{S_I}, s{S_H}, 8")
    A(f"s_add_u32 s{S_BASE}, s{S_BASE}, s{S_I}")
    A("s_waitcnt lgkmcnt(0)")
    A(f"s_mov_b64 {sr(R_X, 2)}, {sr(P_AX, 2)}")
    A(f"s_mov_b64 {sr(R_W, 2)}, {sr(P_AWQ, 2)}")

    def wload_grp(grp, stride, voff, flags):
        for u in range(4):
            off = (8 * u + grp) * stride
            rg = W0 + (grp * 4 + u) * 4
            imm = off & 4095 if stride == 1024 else 0
            so = off - imm
            if so:
                A(f"s_add_u32 s{S_I}, s{S_BASE}, {so}")
            A(f"buffer_load_dwordx4 {vr(rg, 4)}, v{voff}, {sr(R_W, 4)}, s{S_I if so else S_BASE} offen offset:{imm} {flags}")
    def gemv_grp(grp):
        for k in range(8):
            A(f"v_and_b32 v{H_B+k}, v{H_XB+grp}, v{H_MA+k}")
        for u in range(4):
            rg = W0 + (grp * 4 + u) * 4
            A(f"v_mfma_f32_16x16x16_bf16 {vr(H_D, 4)}, {vr(rg, 2)}, {vr(H_B + 2 * u, 2)}, {vr(H_D, 4)}")
            A(f"v_mfma_f32_16x16x16_bf16 {vr(H_D + 4, 4)}, {vr(rg + 2, 2)}, {vr(H_B + 2 * u, 2)}, {vr(H_D + 4, 4)}")
    def xb_from_xq():
        for grp in range(8):
            A(f"v_perm_b32 v{H_XB+grp}, v{H_XQ+grp//2}, v{H_XQ+grp//2}, s{S_SEL1 if grp & 1 else S_SEL0}")
    def zero_D():
        for i in range(8): A(f"v_mov_b32 v{H_D+i}, 0")
    def reduce_D(ulo, uhi):
        A("s_nop 7")
        bank_reduce([H_D, H_D + 1, H_D + 2, H_D + 3], ulo, H_T + 2, H_T + 3)
        bank_reduce([H_D + 4, H_D + 5, H_D + 6, H_D + 7], uhi, H_T + 4, H_T + 5)
    def sanitize(regs, nanreg):
        for i, r in enumerate(regs):
            A(f"v_cmp_eq_u32 {sr(S_PV + 2 * i, 2)}, -1, v{r}")
        for i, r in enumerate(regs):
            A(f"v_cndmask_b32 v{r}, v{r}, v{nanreg}, {sr(S_PV + 2 * i, 2)}")
    def gather(tag, loads, slp_many, slp_few, thr):
        A(f"s_mov_b64 s[56:57], exec")
        A(f"s_mov_b32 s{S_I}, {spinmax}")
        A.label(f"L_g{tag}")
        for dst, va in loads:
            A(f"global_load_dwordx4 {vr(dst, 4)}, v{va}, {sr(P_WS, 2)} sc1")
        A(f"s_sub_u32 s{S_I}, s{S_I}, 1")
        A(f"s_cbranch_scc1 L_gx{tag}")
        for n, (dst, va) in enumerate(loads):
            A(f"s_waitcnt vmcnt({len(loads) - 1 - n})")
            if n == 0:
                A(f"v_max3_u32 v{H_T}, v{dst}, v{dst+1}, v{dst+2}")
                A(f"v_max_u32 v{H_T}, v{H_T}, v{dst+3}")
            else:
                A(f"v_max3_u32 v{H_T}, v{H_T}, v{dst}, v{dst+1}")
                A(f"v_max3_u32 v{H_T}, v{H_T}, v{dst+2}, v{dst+3}")
        A(f"v_cmp_eq_u32 vcc, -1, v{H_T}")
        A("s_nop 0")
        A(f"s_cbranch_vccz L_gx{tag}")
        A("s_mov_b64 exec, vcc")
        if slp_many != slp_few:
            A(f"s_bcnt1_i32_b64 s{S_T2}, vcc")
            A(f"s_cmp_gt_u32 s{S_T2}, {thr}")
            A(f"s_cbranch_scc1 L_gl{tag}")
            A(f"s_sleep {slp_few}")
            A(f"s_branch L_g{tag}")
            A.label(f"L_gl{tag}")
        A(f"s_sleep {slp_many}")
        A(f"s_branch L_g{tag}")
        A.label(f"L_gx{tag}")
        A("s_mov_b64 exec, s[56:57]")
        A("s_waitcnt vmcnt(0)")
    def wo_stage(ptr, s_head):
        A(f"s_mov_b64 {sr(R_W, 2)}, {sr(ptr, 2)}")
        A(f"s_lshl_b32 s{S_BASE}, s{s_head}, 17")
        A(f"s_lshl_b32 s{S_I}, s{HW}, 8")
        A(f"s_add_u32 s{S_BASE}, s{S_BASE}, s{S_I}")
        A(f"s_lshl_b32 s{S_T2}, s{HW}, 15")
        A(f"s_add_u32 s{S_T2}, s{S_T2}, {L_WO}")
        for n in range(32):
            A(f"s_add_u32 m0, s{S_T2}, {n * 1024}")
            A(f"s_add_u32 s{S_I}, s{S_BASE}, {n * 4096}")
            A(f"buffer_load_dwordx4 v{VD + ((n >> 1) & 1)}, {sr(R_W, 4)}, s{S_I} offen {wflags} lds")
            if n % 8 == 7: A(f"s_waitcnt vmcnt({wot})")
    def wo_fetch():
        for ct in range(8):
            for st in range(4):
                for h in range(2):
                    rg = W0 + (ct * 4 + st) * 4 + 2 * h
                    A(f"ds_read_b64_tr_b16 {vr(rg, 2)}, v{VT + ct} offset:{(32 * st + 4 * h) * 256}")
            if ct & 1: A("s_waitcnt lgkmcnt(0)")
    def merge_factors(normalize):
        A(f"v_max3_f32 v{MM}, v{ML}, v{ML+1}, v{ML+2}")
        A(f"v_max_f32 v{MM}, v{MM}, v{ML+3}")
        for i in range(4): A(f"v_sub_f32 v{F+i}, v{ML+i}, v{MM}")
        for i in range(4): A(f"v_exp_f32 v{F+i}, v{F+i}")
        A("s_nop 0")
        A(f"v_mul_f32 v{LL}, v{F}, v{ML+4}")
        for i in range(1, 4): A(f"v_fmac_f32 v{LL}, v{F+i}, v{ML+4+i}")
        if normalize:
            A(f"v_rcp_f32 v{LL}, v{LL}")
            A("s_nop 0")
            for i in range(4): A(f"v_mul_f32 v{F+i}, v{F+i}, v{LL}")
    def merge_vals(n):
        for t in range(n): A(f"v_mul_f32 v{PO+t}, v{F}, v{PO+t}")
        for w in range(1, 4):
            for t in range(n): A(f"v_fmac_f32 v{PO+t}, v{F+w}, v{PO+w*n+t}")

    A.c("mark every hand-off slot of this workgroup as not yet written (the chunk counters start at -1 too)")
    A(f"global_store_dwordx4 v{VY}, {vr(SQ, 4)}, {sr(P_WS, 2)} sc1")
    A("s_mov_b32 exec_hi, 0xf000010f")
    A(f"global_store_dwordx4 v{H_T+9}, {vr(SQ, 4)}, {sr(P_WS, 2)} sc1")
    A("s_mov_b64 exec, -1")
    A(f"buffer_load_dwordx4 {vr(H_XQ, 4)}, v{H_OX}, {sr(R_X, 4)}, s{S_XO} offen")
    for grp in range(8): wload_grp(grp, 8192, H_OQ, wflags)
    A("s_barrier")
    build_masks(H_MA, H_LANE, H_T)
    A(f"s_mov_b32 s{S_SEL0}, 0x01000100")
    A(f"s_mov_b32 s{S_SEL1}, 0x03020302")
    zero_D()
    A(f"v_bfe_u32 v{H_T}, v{H_LANE}, 2, 2")
    A(f"v_lshrrev_b32 v{H_T+1}, 4, v{H_LANE}")
    A(f"v_and_b32 v{H_E}, 3, v{H_LANE}")
    A(f"v_lshl_add_u32 v{H_E}, v{H_T}, 3, v{H_E}")
    A(f"v_lshl_add_u32 v{H_E}, v{H_T+1}, 5, v{H_E}")
    A(f"s_lshl_b32 s{S_I}, s{HW}, 9")
    A(f"v_lshlrev_b32 v{H_E}, 2, v{H_E}")
    A(f"v_add_u32 v{H_E}, s{S_I}, v{H_E}")
    A(f"v_mov_b32 v{H_T}, 0")
    A(f"v_mov_b32 v{H_T+1}, {L_CNT}")
    A(f"ds_write_b32 v{H_T+1}, v{H_T}")
    A("s_waitcnt vmcnt(32)")
    xb_from_xq()
    for grp in range(8):
        A(f"s_waitcnt vmcnt({(7 - grp) * 4})")
        gemv_grp(grp)
    reduce_D(H_T, H_T + 1)
    A(f"ds_write_b32 v{H_E}, v{H_T} offset:{L_QA}")
    A(f"ds_write_b32 v{H_E}, v{H_T+1} offset:{L_QA + 16}")
    A("s_waitcnt lgkmcnt(0)")
    A("s_barrier")
    stamp(0)
    A.c("---- q_B of head hq, published to the 4 sibling workgroups")
    for _ in range(qbsleep): A("s_sleep 127")
    A(f"s_mov_b64 {sr(R_X, 2)}, {sr(P_BX, 2)}")
    A(f"s_mov_b64 {sr(R_W, 2)}, {sr(P_BWQ, 2)}")
    A(f"s_lshl_b32 s{S_BASE}, s{HW}, 20")
    A(f"s_lshl_b32 s{S_I}, s{S_HQ}, 8")
    A(f"s_add_u32 s{S_BASE}, s{S_BASE}, s{S_I}")
    zero_D()
    A(f"buffer_load_dwordx4 {vr(H_XQ, 4)}, v{H_OX}, {sr(R_X, 4)}, s{S_XO} offen")
    for grp in range(qbPD): wload_grp(grp, 8192, H_OQ, wflags)
    A(f"s_lshl_b32 s{S_I}, s{S_B}, 5")
    A(f"s_add_u32 s{S_BA}, s{P_DBG}, s{S_I}")
    A(f"s_addc_u32 s{S_BA+1}, s{P_DBG+1}, 0")
    A(f"s_lshl_b32 s{S_I}, s{S_B}, 10")
    A(f"s_add_u32 s{S_I}, s{S_I}, s{S_HQ}")
    A(f"s_lshl_b32 s{S_I}, s{S_I}, 7")
    A(f"s_add_u32 s{S_I}, s{S_I}, {W_Y}")
    A(f"v_lshrrev_b32 v{RA}, 3, v{H_LANE}")
    A(f"v_lshlrev_b32 v{RA}, 12, v{RA}")
    A(f"v_and_b32 v{H_T}, 7, v{H_LANE}")
    A(f"v_lshl_add_u32 v{RA}, v{H_T}, 4, v{RA}")
    A(f"v_add_u32 v{RA}, s{S_I}, v{RA}")
    for i in range(1, 4): A(f"v_add_u32 v{RA+i}, {i * 32768}, v{RA}")
    A(f"v_and_b32 v{RO}, 7, v{H_LANE}")
    A(f"v_bfe_u32 v{H_T}, v{H_LANE}, 4, 1")
    A(f"v_lshl_add_u32 v{RO}, v{H_T}, 4, v{RO}")
    A(f"v_bfe_u32 v{H_T}, v{H_LANE}, 3, 1")
    A(f"v_lshl_add_u32 v{RO}, v{H_T}, 9, v{RO}")
    A(f"s_lshr_b32 s{S_I}, s{S_HQ}, 1")
    A(f"s_lshl_b32 s{S_I}, s{S_I}, 5")
    A(f"s_and_b32 s{S_T2}, s{S_HQ}, 1")
    A(f"s_lshl_b32 s{S_T2}, s{S_T2}, 3")
    A(f"s_add_u32 s{S_I}, s{S_I}, s{S_T2}")
    A(f"s_lshl_b32 s{S_T2}, s{S_B}, 10")
    A(f"s_add_u32 s{S_I}, s{S_I}, s{S_T2}")
    A(f"v_add_lshl_u32 v{RO}, v{RO}, s{S_I}, 1")
    A(f"v_lshlrev_b32 v{VP}, 3, v{H_LANE}")
    A(f"v_mov_b32 v{VM}, 0")
    A(f"v_mov_b32 v{VNAN}, 0x7fc07fc0")
    A(f"s_lshl_b32 s{S_I}, s{HW}, 9")
    A(f"v_add_u32 v{VS1}, s{S_I}, v{H_L16}")
    A(f"s_lshl_b32 s{S_I}, s{HW}, 5")
    A(f"v_mov_b32 v{VS2}, s{S_I}")
    A(f"s_andn2_b32 s{S_I}, s2, 3")
    A(f"s_add_u32 s{S_I}, s{S_I}, s{HW}")
    A(f"s_lshl_b32 s{S_I}, s{S_I}, 2")
    A(f"s_add_u32 s{S_I}, s{S_I}, s{S_S}")
    A(f"s_lshl_b32 s{S_I}, s{S_I}, 10")
    A(f"v_add_u32 v{VS3}, s{S_I}, v{H_L16}")
    A(f"s_mul_i32 s{S_I}, s{HW}, 640")
    A(f"v_add_u32 v{RO+1}, s{S_I}, v{H_L16}")
    A(f"s_waitcnt vmcnt({qbPD * 4})")
    xb_from_xq()
    for grp in range(8):
        A(f"s_waitcnt vmcnt({(min(qbPD, 8 - grp) - 1) * 4})")
        if grp + qbPD < 8: wload_grp(grp + qbPD, 8192, H_OQ, wflags)
        gemv_grp(grp)
    reduce_D(H_T, H_T + 1)
    A(f"ds_write_b32 v{H_E}, v{H_T} offset:{L_Q2}")
    A(f"ds_write_b32 v{H_E}, v{H_T+1} offset:{L_Q2 + 16}")
    A(f"v_mov_b32 v{H_T+2}, {L_CNT}")
    A(f"v_mov_b32 v{H_T+3}, 1")
    A("s_waitcnt lgkmcnt(0)")
    A("s_mov_b64 exec, 1")
    A(f"ds_add_rtn_u32 v{H_T+4}, v{H_T+2}, v{H_T+3}")
    A("s_mov_b64 exec, -1")
    A("s_waitcnt lgkmcnt(0)")
    A(f"v_readfirstlane_b32 s{S_T2}, v{H_T+4}")
    A(f"s_cmp_lg_u32 s{S_T2}, 3")
    A("s_cbranch_scc1 L_noq")
    A.c("the last of the 4 waves sums the partials, publishes q_B and raises the 'slots are marked' flag")
    A(f"v_lshlrev_b32 v{H_T}, 1, v{H_L16}")
    A(f"v_mov_b32 v{H_T+8}, s2")
    A("s_mov_b64 exec, 0xffff")
    for w in range(4):
        A(f"ds_read_b128 {vr(PO + 8 * w, 4)}, v{H_T} offset:{L_Q2 + w * 512}")
        A(f"ds_read_b128 {vr(PO + 8 * w + 4, 4)}, v{H_T} offset:{L_Q2 + w * 512 + 16}")
    A(f"s_lshl_b32 s{S_I}, s2, 8")
    A(f"s_add_u32 s{S_I}, s{S_I}, {W_QB}")
    A(f"v_add_u32 v{H_T+1}, s{S_I}, v{H_L16}")
    A("s_waitcnt lgkmcnt(0)")
    for i in range(0, 8, 2):
        A(f"v_pk_add_f32 {vr(PO + i, 2)}, {vr(PO + i, 2)}, {vr(PO + 8 + i, 2)}")
        A(f"v_pk_add_f32 {vr(PO + 16 + i, 2)}, {vr(PO + 16 + i, 2)}, {vr(PO + 24 + i, 2)}")
    for i in range(0, 8, 2):
        A(f"v_pk_add_f32 {vr(PO + i, 2)}, {vr(PO + i, 2)}, {vr(PO + 16 + i, 2)}")
    for i in range(4):
        A(f"v_cvt_pk_bf16_f32 v{SQ+i}, v{PO+2*i}, v{PO+2*i+1}")
    sanitize([SQ, SQ + 1, SQ + 2, SQ + 3], VNAN)
    A(f"global_store_dwordx4 v{H_T+1}, {vr(SQ, 4)}, {sr(P_WS, 2)} sc1")
    A("s_mov_b64 exec, 1")
    A(f"global_store_byte v{H_T+8}, v{H_T+3}, {sr(P_DBG, 2)} sc1")
    A("s_mov_b64 exec, -1")
    A.label("L_noq")
    stamp(14)
    A(f"v_lshrrev_b32 v{H_T}, 4, v{H_LANE}")
    A(f"v_bfe_u32 v{H_T+1}, v{H_LANE}, 1, 3")
    A(f"v_xor_b32 v{H_T+1}, v{H_T+1}, v{H_T}")
    A(f"v_and_b32 v{H_T+2}, 1, v{H_LANE}")
    A(f"v_lshlrev_b32 v{H_T+2}, 4, v{H_T+2}")
    A(f"v_lshl_add_u32 v{H_T+2}, v{H_T}, 10, v{H_T+2}")
    A(f"v_lshl_add_u32 v{VD}, v{H_T+1}, 5, v{H_T+2}")
    A(f"v_xor_b32 v{VD+1}, 128, v{VD}")
    A(f"v_bfe_u32 v{H_T+1}, v{H_LANE}, 2, 2")
    A(f"v_lshl_add_u32 v{H_T+2}, v{H_T}, 3, v{H_T+1}")
    A(f"v_lshlrev_b32 v{H_T+2}, 8, v{H_T+2}")
    A(f"v_and_b32 v{H_T+3}, 3, v{H_LANE}")
    A(f"v_lshl_add_u32 v{H_T+2}, v{H_T+3}, 3, v{H_T+2}")
    A(f"s_lshl_b32 s{S_I}, s{HW}, 15")
    A(f"s_add_u32 s{S_I}, s{S_I}, {L_WO}")
    A(f"v_add_u32 v{H_T+2}, s{S_I}, v{H_T+2}")
    A(f"v_bfe_u32 v{H_T+3}, v{H_LANE}, 2, 3")
    for ct in range(8):
        A(f"v_xor_b32 v{H_T+4}, {ct}, v{H_T+3}")
        A(f"v_lshl_add_u32 v{VT+ct}, v{H_T+4}, 5, v{H_T+2}")
    A(f"s_lshl_b32 s{S_I}, s{HW}, 8")
    A(f"s_add_u32 s{S_I}, s{S_I}, {L_OS}")
    A(f"v_lshlrev_b32 v{VOW}, 2, v{H_LANE}")
    A(f"v_add_u32 v{VOW}, s{S_I}, v{VOW}")
    A(f"v_lshlrev_b32 v{VOR}, 4, v{H_T}")
    A(f"v_add_u32 v{VOR}, s{S_I}, v{VOR}")
    wo_stage(P_AWO, S_H)
    A("s_waitcnt vmcnt(0)")
    wo_fetch()
    wo_stage(P_BWO, S_HQ)
    stamp(15)
    if tlb:
        A.c("touch the pages used later (address-translation warm-up)")
        A(f"s_lshr_b32 s{S_I}, s2, 2")
        A(f"s_lshl_b32 s{S_I}, s{S_I}, 20")
        A(f"v_mov_b32 v{H_T+8}, s{S_I}")
        A(f"s_lshl_b32 s{S_I}, s{S_HQ}, 17")
        A(f"v_mov_b32 v{H_T+9}, s{S_I}")
        A(f"s_cmp_lg_u32 s{HW}, 2")
        A("s_cbranch_scc1 L_notlb")
        A("s_mov_b64 exec, 1")
        A(f"global_load_dword v{H_T+10}, v{H_T+8}, {sr(P_BK, 2)} nt")
        A(f"global_load_dword v{H_T+11}, v{H_T+8}, {sr(P_BV, 2)} nt")
        A("s_mov_b64 exec, -1")
        A.label("L_notlb")
    A(f"s_cmp_lg_u32 s{HW}, 0")
    A("s_cbranch_scc1 L_qbdone")
    for _ in range(zsleep): A("s_sleep 127")
    A.c("every workgroup of this batch has marked its slots")
    A(f"s_mov_b32 s{S_I}, {spinmax}")
    A("s_branch L_z1")
    A.label("L_z")
    A(f"s_sleep {sleep}")
    A.label("L_z1")
    A(f"s_load_dwordx8 {sr(S_PV, 8)}, {sr(S_BA, 2)}, 0x0 glc")
    A(f"s_sub_u32 s{S_I}, s{S_I}, 1")
    A("s_waitcnt lgkmcnt(0)")
    A("s_cbranch_scc1 L_zx")
    A(f"s_and_b64 {sr(S_PV, 2)}, {sr(S_PV, 2)}, {sr(S_PV + 2, 2)}")
    A(f"s_and_b64 {sr(S_PV + 4, 2)}, {sr(S_PV + 4, 2)}, {sr(S_PV + 6, 2)}")
    A(f"s_and_b64 {sr(S_PV, 2)}, {sr(S_PV, 2)}, {sr(S_PV + 4, 2)}")
    A(f"s_and_b32 s{S_PV}, s{S_PV}, s{S_PV+1}")
    A(f"s_cmp_lg_u32 s{S_PV}, 0x01010101")
    A("s_cbranch_scc1 L_z")
    A.label("L_zx")
    A(f"s_andn2_b32 s{S_I}, s2, 3")
    A(f"s_lshl_b32 s{S_I}, s{S_I}, 8")
    A(f"s_add_u32 s{S_I}, s{S_I}, {W_QB}")
    A(f"v_add_u32 v{H_T+1}, s{S_I}, v{H_L16}")
    gather("q", [(PO, H_T + 1)], sleep, sleep, 0)
    A(f"ds_write_b128 v{H_L16}, {vr(PO, 4)} offset:{L_QB}")
    A.label("L_qbdone")
    A("s_waitcnt lgkmcnt(0)")
    X_ALL, X_33, X_32 = 66, 68, 70
    if dry2:
        A.c("instruction-cache / TLB warm-up: wave 0 walks the final code with no lane active")
        A(f"global_load_ushort v{H_T+8}, v{RO}, {sr(P_OUT, 2)}")
        for x in (X_ALL, X_33, X_32): A(f"s_mov_b64 {sr(x + 8, 2)}, 0")
        A(f"s_cmp_lg_u32 s{HW}, 0")
        A("s_cbranch_scc1 L_dryret2")
        A("s_mov_b64 exec, 0")
        A("s_branch L_stage1")
        A.label("L_dryret2")
    if dry:
        A(f"s_cmp_lg_u32 s{HW}, 1")
        A("s_cbranch_scc1 L_dryret")
        A("s_mov_b64 exec, 0")
        A("s_branch L_finB")
        A.label("L_dryret")
    A("s_mov_b64 exec, -1")
    A(f"s_mov_b64 {sr(X_ALL + 8, 2)}, -1")
    A(f"s_mov_b32 s{X_33 + 8}, -1")
    A(f"s_mov_b32 s{X_33 + 9}, 1")
    A(f"s_mov_b32 s{X_32 + 8}, 0")
    A(f"s_mov_b32 s{X_32 + 9}, 1")
    A(f"s_mov_b32 s{S_PH2}, 0")
    A("s_waitcnt vmcnt(0) lgkmcnt(0)")
    stamp(1)
    A("s_barrier")
    A("s_barrier")
    stamp(2)
    A(f"ds_read_b128 {vr(ML, 4)}, v{VM} offset:{L_MLA}")
    A(f"ds_read_b128 {vr(ML + 4, 4)}, v{VM} offset:{L_MLA + 16}")
    for w in range(4):
        A(f"ds_read_b64 {vr(PO + 2 * w, 2)}, v{VP} offset:{L_PA + w * 512}")
    A("s_waitcnt lgkmcnt(4)")
    A.label("L_project")
    A.c("---- shared by A and B: merge 4 partials, normalise, project")
    merge_factors(True)
    A("s_waitcnt lgkmcnt(0)")
    merge_vals(2)
    A(f"v_cvt_pk_bf16_f32 v{PO}, v{PO}, v{PO+1}")
    A(f"ds_write_b32 v{VOW}, v{PO}")
    A("s_waitcnt lgkmcnt(0)")
    for st in range(4):
        A(f"ds_read_b128 {vr(AO + 4 * st, 4)}, v{VOR} offset:{64 * st}")
    for st in range(4):
        A(f"s_waitcnt lgkmcnt({3 - st})")
        for ct in range(8):
            c = "0" if st == 0 else vr(DD + 4 * ct, 4)
            A(f"v_mfma_f32_16x16x32_bf16 {vr(DD + 4 * ct, 4)}, {vr(AO + 4 * st, 4)}, {vr(W0 + (ct * 4 + st) * 4, 4)}, {c}")
    A("s_nop 2")
    A(f"s_cmp_lg_u32 s{S_PH2}, 0")
    A("s_cbranch_scc1 L_tail")
    def pick(dst):
        for ct in range(8):
            A(f"v_mov_b32_dpp v{dst + (ct & 1)}, v{DD + 4 * ct} quad_perm:[0,1,2,3] row_mask:{1 << (ct >> 1):#x} bank_mask:0xf")
    pick(YS)
    stamp(3)
    wo_fetch()
    A(f"s_mov_b32 s{S_PH2}, 1")
    stamp(13)
    A("s_barrier")
    A.label("L_stage1")
    A.c("---- B stage 1: merge head hw over the 4 streamer waves, publish (o[128], m, l)")
    A(f"ds_read_b128 {vr(ML, 4)}, v{VS2} offset:{L_MLB}")
    A(f"ds_read_b128 {vr(ML + 4, 4)}, v{VS2} offset:{L_MLB + 16}")
    for w in range(4):
        A(f"ds_read_b128 {vr(PO + 4 * w, 4)}, v{VS1} offset:{L_PB + w * 2048}")
    stamp(4)
    A("s_waitcnt lgkmcnt(0)")
    merge_factors(False)
    merge_vals(4)
    A(f"s_mov_b64 exec, {sr(X_32 + 8, 2)}")
    A(f"v_mov_b32 v{PO}, v{MM}")
    A(f"v_mov_b32 v{PO+1}, v{LL}")
    A(f"s_mov_b64 exec, {sr(X_33 + 8, 2)}")
    sanitize([PO, PO + 1, PO + 2, PO + 3], VNAN)
    A(f"global_store_dwordx4 v{VSL}, {vr(PO, 4)}, {sr(P_WS, 2)} sc1")
    stamp(8)
    gather("p", [(PO + 4, VS3)], ppl[0], ppl[1], 64)
    A(f"ds_write_b128 v{RO+1}, {vr(PO + 4, 4)} offset:{L_P2}")
    A(f"s_mov_b64 exec, {sr(X_ALL + 8, 2)}")
    A("s_waitcnt lgkmcnt(0)")
    stamp(9)
    A("s_cbranch_execz L_nobar")
    A("s_barrier")
    A.label("L_nobar")
    for p in range(4):
        A(f"ds_read_b64 {vr(PO + 8 + 2 * p, 2)}, v{VM} offset:{L_P2 + p * 640 + 512}")
    for p in range(4):
        A(f"ds_read_b64 {vr(PO + 2 * p, 2)}, v{VP} offset:{L_P2 + p * 640}")
    A("s_waitcnt lgkmcnt(4)")
    for p in range(4):
        A(f"v_mov_b32 v{ML+p}, v{PO+8+2*p}")
        A(f"v_mov_b32 v{ML+4+p}, v{PO+9+2*p}")
    A("s_cbranch_execnz L_project")
    A.label("L_tail")
    pick(YS + 2)
    sanitize([YS, YS + 1, YS + 2, YS + 3], VNAN)
    A(f"global_store_dwordx4 v{VY}, {vr(YS, 4)}, {sr(P_WS, 2)} sc1")
    stamp(5)
    A(f"s_cmp_lg_u32 s{HW}, 0")
    A("s_cbranch_scc1 L_fin")
    gather("y", [(PO + 4 * i, RA + i) for i in range(4)], psl[0], psl[1], psl[2])
    stamp(6)
    for i in (0, 2):
        A(f"v_pk_add_f32 {vr(PO + i, 2)}, {vr(PO + i, 2)}, {vr(PO + 4 + i, 2)}")
        A(f"v_pk_add_f32 {vr(PO + 8 + i, 2)}, {vr(PO + 8 + i, 2)}, {vr(PO + 12 + i, 2)}")
    for i in (0, 2):
        A(f"v_pk_add_f32 {vr(PO + i, 2)}, {vr(PO + i, 2)}, {vr(PO + 8 + i, 2)}")
    A("s_nop 0")
    A(f"v_add_f32_dpp v{H_T}, v{PO}, v{PO} row_ror:8 row_mask:0xf bank_mask:0x3")
    A(f"v_add_f32_dpp v{H_T+1}, v{PO+1}, v{PO+1} row_ror:8 row_mask:0xf bank_mask:0x3")
    A(f"v_add_f32_dpp v{H_T}, v{PO+2}, v{PO+2} row_ror:8 row_mask:0xf bank_mask:0xc")
    A(f"v_add_f32_dpp v{H_T+1}, v{PO+3}, v{PO+3} row_ror:8 row_mask:0xf bank_mask:0xc")
    A("s_nop 1")
    A(f"v_permlane16_swap_b32 v{H_T}, v{H_T+1}")
    A(f"v_add_f32 v{H_T}, v{H_T}, v{H_T+1}")
    A(f"v_mov_b32 v{H_T+1}, v{H_T}")
    A("s_nop 1")
    A(f"v_permlane32_swap_b32 v{H_T}, v{H_T+1}")
    A(f"v_add_f32 v{H_T}, v{H_T}, v{H_T+1}")
    A(f"v_cvt_pk_bf16_f32 v{H_T}, v{H_T}, v{H_T}")
    A("s_mov_b32 exec_hi, 0")
    if dry2: A("s_cbranch_execz L_dryret2")
    A(f"global_store_short v{RO}, v{H_T}, {sr(P_OUT, 2)} {outf}")
    if ts:
        A("s_waitcnt vmcnt(0)")
        stamp(7)
    A.label("L_fin")
    flush_stamps(True)
    A.label("L_end")
    A("s_endpgm")
    A.L += ['.section .rodata,"a"', ".p2align 6", f".amdhsa_kernel {NAME}",
            "  .amdhsa_next_free_vgpr 256", f"  .amdhsa_next_free_sgpr {96 if ts else 80}", "  .amdhsa_accum_offset 256",
            "  .amdhsa_group_segment_fixed_size 0", "  .amdhsa_kernarg_size 104", "  .amdhsa_user_sgpr_count 2",
            "  .amdhsa_user_sgpr_kernarg_segment_ptr 1", "  .amdhsa_system_sgpr_workgroup_id_x 1",
            "  .amdhsa_float_denorm_mode_32 3", ".end_amdhsa_kernel"]
    return A.text()

if __name__ == "__main__":
    out = sys.argv[1] if len(sys.argv) > 1 else "concat_heads__mha_block_cached__gqa_block_cached__decode.s"
    kw = {}
    for a in sys.argv[2:]:
        k, v = a.split("=", 1)
        try: v = int(v)
        except ValueError:
            if v.startswith("("): v = eval(v)
        kw[k] = v
    open(out, "w").write(gen(**kw))
```

```python
import sys, math, struct
NAME = "concat_heads__mha_block_cached__gqa_block_cached__decode_kernel"

HEADER = """\
"""

def f32bits(x):
    return struct.unpack("<I", struct.pack("<f", x))[0]

class Asm:
    def __init__(self):
        self.L = []
    def __call__(self, s):
        self.L.append("  " + s.rstrip())
    def label(self, s):
        self.L.append(s + ":")
    def c(self, s):
        self.L.append("  ; " + s)
    def text(self):
        return "\n".join(self.L) + "\n"

def vr(b, n=1):
    return f"v{b}" if n == 1 else f"v[{b}:{b+n-1}]"
def sr(b, n=1):
    return f"s{b}" if n == 1 else f"s[{b}:{b+n-1}]"

L_QA = 0
L_QB = 2048
L_PA = 3072
L_MLA = 5120
L_MLB = 5184
L_CNT = 5376
L_Q2 = 5632
L_PB = 8192
L_P2 = 16384
L_OS = 19456
L_WO = 20480
LDS_BYTES = 20480 + 131072
W_PB = 0
W_Y = 1 << 20
W_QB = 2 << 20
W_CT = 3 << 20
W_TS = 4 << 20

def gen(D=3, PT=4, PRE=1, kvflags="nt", wflags="", qbPD=1, ts=0, sleep=48, dry=1, now=0, nox=0, dyn=1,
        spinmax=1 << 16, psl=(8, 1, 16), ppl=(16, 1, 8), hprio=3, zsleep=1, wot=0, qbsleep=0, xr=0, dbgts=0, remap=2, fine=2, dry2=1, rot=0, xm=0, wotb=12, tlb=1, outf="", fB=None, fAK=None, fAV=None, barit=4, mimic=1, xat=0, rot58=0, cts=16384, guided=0):
    RB, PP = 4, 2
    assert D <= RB - 1 and PT % 4 == 0 and (PT + D) * 4 <= 60
    A = Asm()
    A.L.append(HEADER.rstrip("\n"))
    A.L.append(f"; @launch grid=(256,1,1) block=(512,1,1) lds={LDS_BYTES}")
    A.L += ['.amdgcn_target "amdgcn-amd-amdhsa--gfx950"', ".text", f".globl {NAME}", ".p2align 8",
            f".type {NAME},@function", f"{NAME}:"]
    P_AX, P_AK, P_AV, P_AWQ, P_AWO, P_BX, P_BK, P_BV, P_BWQ, P_BWO, P_OUT, P_DBG, P_WS = [4 + 2 * i for i in range(13)]
    A("s_cmp_ge_u32 s2, 256")
    A("s_cbranch_scc1 L_end")
    if xr: A(f"s_xor_b32 s2, s2, {xr}")
    S_S, S_HQ, S_B, S_H = 30, 31, 60, 61
    def do_remap():
        A.c("siblings (wg & ~3 after the remap) sit on XCDs {0,3,5,6} or {1,2,4,7} under round-robin placement (speed only)")
        A("s_lshr_b32 s3, s2, 1")
        A("s_xor_b32 s3, s3, s2")
        A("s_and_b32 s3, s3, 1")
        A("s_lshl_b32 s3, s3, 2")
        A("s_xor_b32 s2, s2, s3")
    A("s_load_dwordx16 s[4:19], s[0:1], 0")
    A("s_load_dwordx8 s[20:27], s[0:1], 64")
    A("s_load_dwordx2 s[28:29], s[0:1], 96")
    A("v_lshrrev_b32 v1, 6, v0")
    A("v_and_b32 v2, 63, v0")
    if remap == 1: do_remap()
    A(f"s_and_b32 s{S_H}, s2, 7")
    A(f"s_lshl_b32 s{S_H}, s{S_H}, 2")
    A(f"s_bfe_u32 s{S_S}, s2, 0x20003")
    A(f"s_add_u32 s{S_H}, s{S_H}, s{S_S}")
    if remap == 2: do_remap()
    A("v_readfirstlane_b32 s3, v1")
    A(f"s_and_b32 s{S_S}, s2, 3")
    A(f"s_and_b32 s{S_HQ}, s2, 31")
    A(f"s_lshr_b32 s{S_B}, s2, 5")
    if ts:
        for i in range(16): A(f"s_mov_b32 s{80 + i}, 0")
    A("s_cmp_ge_u32 s3, 4")
    A("s_cbranch_scc1 L_helper")

    inhelper = [False]
    def stamp(slot):
        if not ts: return
        if dbgts and (not inhelper[0] or slot not in (0, 2, 4, 7, 10)): return
        A("s_memrealtime s[58:59]")
        A("s_waitcnt lgkmcnt(0)")
        A(f"s_mov_b32 s{80 + slot}, s58")
    def flush_stamps(helper=False):
        if not ts: return
        if dbgts:
            if not helper: return
            A("s_cmp_lg_u32 s3, 4")
            A("s_cbranch_scc1 L_end")
            A("s_cmp_ge_u32 s2, 4")
            A("s_cbranch_scc1 L_end")
            A("s_mov_b64 exec, 1")
            for i, sl in enumerate((0, 2, 4, 7)):
                A(f"s_sub_u32 s72, s{80 + sl}, s90")
                A(f"v_mov_b32 v{8 + i}, s72")
            A("s_lshl_b32 s72, s2, 4")
            A("v_mov_b32 v12, s72")
            A(f"global_store_dwordx4 v12, v[8:11], s[{P_DBG}:{P_DBG+1}]")
            return
        A("s_mov_b64 exec, -1")
        A("v_mov_b32 v9, 0")
        for i in range(16): A(f"v_writelane_b32 v9, s{80 + i}, {i}")
        A("s_lshl_b32 s72, s2, 3")
        A("s_add_u32 s72, s72, s3")
        A("s_lshl_b32 s72, s72, 6")
        A(f"s_add_u32 s72, s72, {W_TS}")
        A("v_lshlrev_b32 v8, 2, v2")
        A("v_add_u32 v8, s72, v8")
        A("s_mov_b64 exec, 0xffff")
        A(f"global_store_dword v8, v9, s[{P_WS}:{P_WS+1}]")

    def build_masks(MA, vj, vt):
        A(f"v_and_b32 v{vt}, 1, v{vj}")
        A(f"v_cmp_eq_u32 vcc, 1, v{vt}")
        A(f"v_mov_b32 v{vt}, 0xffff")
        A(f"v_mov_b32 v{vt+1}, 0xffff0000")
        A(f"v_cndmask_b32 v{vt}, v{vt}, v{vt+1}, vcc")
        A(f"v_bfe_u32 v{vt+1}, v{vj}, 1, 3")
        for k in range(8):
            A(f"v_cmp_eq_u32 vcc, {k}, v{vt+1}")
            A("s_nop 1")
            A(f"v_cndmask_b32 v{MA+k}, 0, v{vt}, vcc")

    def bank_reduce(src, dst, Ta, Tb):
        A(f"v_add_f32_dpp v{Ta}, v{src[0]}, v{src[0]} row_ror:8 row_mask:0xf bank_mask:0x3")
        A(f"v_add_f32_dpp v{Tb}, v{src[1]}, v{src[1]} row_ror:8 row_mask:0xf bank_mask:0x3")
        A(f"v_add_f32_dpp v{Ta}, v{src[2]}, v{src[2]} row_ror:8 row_mask:0xf bank_mask:0xc")
        A(f"v_add_f32_dpp v{Tb}, v{src[3]}, v{src[3]} row_ror:8 row_mask:0xf bank_mask:0xc")
        A("s_nop 0")
        A(f"v_add_f32_dpp v{dst}, v{Ta}, v{Ta} row_shl:4 row_mask:0xf bank_mask:0x5")
        A(f"v_add_f32_dpp v{dst}, v{Tb}, v{Tb} row_shr:4 row_mask:0xf bank_mask:0xa")

    V_OFF, V_LANE, VADDR = 1, 2, 3
    QA, MA = 4, 8
    M_A, L_A, T1, T2, MN, VML, AL, PPv, VPA, VPB, VMB = 16, 17, 18, 19, 20, 21, 22, 24, 28, 29, 30
    DA, SS, TT, UU, BOP = 32, 40, 44, 52, 56
    RING = 64
    TMP = 128
    QB, DB, MB, M_B, L_B, SB = 128, 144, 152, 154, 155, 156
    assert TMP + PT * 16 <= 256
    SK, SV = 32, 36
    S_OFF, S_CNT, S_T, S_C, S_OFFB, S_CL, S_CA = 40, 41, 42, 43, 44, 45, 46

    def breg(t):
        return TMP + t * 16 if t < PT else RING + ((t - PT) % RB) * 16
    def issue(base, isV, pair):
        s = SV if isV else SK
        if pair == 0:
            so = f"s{S_OFF}"
        else:
            A(f"s_add_u32 s{S_T}, s{S_OFF}, {pair * 16384}")
            so = f"s{S_T}"
        for j in range(4):
            A(f"buffer_load_dwordx4 {vr(base + 4 * j, 4)}, v{V_OFF}, {sr(s, 4)}, {so} offen offset:{j * 1024} {(kvflags if fAV is None else fAV) if isV else (kvflags if fAK is None else fAK)}")

    A.c("---------------- streamer ----------------")
    A(f"v_lshlrev_b32 v{V_OFF}, 4, v0")
    A(f"s_mul_i32 s{S_T}, s3, 3072")
    A(f"v_add_u32 v{V_OFF}, s{S_T}, v{V_OFF}")
    A(f"s_lshl_b32 s{S_OFF}, s{S_B}, 5")
    A(f"s_add_u32 s{S_OFF}, s{S_OFF}, s{S_H}")
    A(f"s_lshl_b32 s{S_OFF}, s{S_OFF}, 20")
    if rot58:
        A(f"s_mov_b32 s54, s{S_OFF}")
        A(f"s_lshl_b32 s{S_T}, s{S_B}, 17")
        A(f"s_add_u32 s{S_OFF}, s{S_OFF}, s{S_T}")
    A(f"s_mov_b32 s{SK+2}, {256 << 20}")
    A(f"s_mov_b32 s{SK+3}, 0x00020000")
    A(f"s_mov_b32 s{SV+2}, {256 << 20}")
    A(f"s_mov_b32 s{SV+3}, 0x00020000")
    A("s_waitcnt lgkmcnt(0)")
    A(f"s_mov_b64 {sr(SK, 2)}, {sr(P_AK, 2)}")
    A(f"s_mov_b64 {sr(SV, 2)}, {sr(P_AV, 2)}")
    stamp(6)
    for t in range(PT + D):
        if t == PRE: A("s_barrier")
        issue(breg(t), t & 1, t // 2)
    stamp(4)
    A(f"s_add_u32 s{S_OFF}, s{S_OFF}, {PT // 2 * 16384}")
    A(f"s_lshr_b32 s{S_OFFB}, s2, 2")
    A(f"s_lshl_b32 s{S_OFFB}, s{S_OFFB}, 20")
    A(f"s_lshr_b32 s{S_T}, s2, 2")
    A(f"s_mul_i32 s{S_T}, s{S_T}, {cts}")
    A(f"s_add_u32 s{S_T}, s{S_T}, {W_CT}")
    A(f"s_add_u32 s{S_CA}, s{P_WS}, s{S_T}")
    A(f"s_addc_u32 s{S_CA+1}, s{P_WS+1}, 0")
    S_C2, S_HI = 52, 53
    if mimic:
        A(f"s_mov_b32 s{S_C}, {f32bits(math.log2(math.e)):#x}")
        A(f"s_mov_b32 s{S_C2}, {f32bits(128.0 ** -0.5):#x}")
        A(f"s_mov_b32 s{S_HI}, 0xffff0000")
    else:
        A(f"s_mov_b32 s{S_C}, {f32bits(math.log2(math.e) / math.sqrt(128.0)):#x}")
    def round_scores(regs):
        if not mimic: return
        for r in regs: A(f"v_cvt_pk_bf16_f32 v{r}, v{r}, v{r}")
        for r in regs: A(f"v_and_b32 v{r}, s{S_HI}, v{r}")
        for r in regs: A(f"v_mul_f32 v{r}, s{S_C2}, v{r}")
        for r in regs: A(f"v_cvt_pk_bf16_f32 v{r}, v{r}, v{r}")
        for r in regs: A(f"v_and_b32 v{r}, s{S_HI}, v{r}")
    build_masks(MA, V_LANE, T1)
    A(f"v_mov_b32 v{M_A}, 0xff800000")
    A(f"v_mov_b32 v{L_A}, 0")
    A(f"v_and_b32 v{VADDR}, 15, v{V_LANE}")
    A(f"v_lshlrev_b32 v{VADDR}, 5, v{VADDR}")
    A(f"v_bfe_u32 v{SS}, v{V_LANE}, 2, 2")
    A(f"v_lshrrev_b32 v{SS+1}, 4, v{V_LANE}")
    A(f"v_and_b32 v{SS+2}, 3, v{V_LANE}")
    A(f"v_lshlrev_b32 v{SS+1}, 7, v{SS+1}")
    A(f"v_lshl_add_u32 v{SS+1}, v{SS+2}, 2, v{SS+1}")
    A(f"v_lshl_add_u32 v{VPA}, v{SS}, 5, v{SS+1}")
    A(f"v_lshl_add_u32 v{VPB}, v{SS}, 9, v{SS+1}")
    A(f"s_lshl_b32 s{S_T}, s3, 9")
    A(f"v_add_u32 v{VPA}, s{S_T}, v{VPA}")
    A(f"s_lshl_b32 s{S_T}, s3, 11")
    A(f"v_add_u32 v{VPB}, s{S_T}, v{VPB}")
    A(f"s_lshl_b32 s{S_T}, s3, 2")
    A(f"v_mov_b32 v{VML}, s{S_T}")
    A(f"v_lshl_add_u32 v{VMB}, v{SS}, 5, v{VML}")
    A("s_barrier")
    Q0 = 32
    for w in range(4):
        A(f"ds_read_b128 {vr(Q0 + 8 * w, 4)}, v{VADDR} offset:{L_QA + w * 512}")
        A(f"ds_read_b128 {vr(Q0 + 8 * w + 4, 4)}, v{VADDR} offset:{L_QA + w * 512 + 16}")
    A("s_waitcnt lgkmcnt(0)")
    for i in range(0, 8, 2):
        A(f"v_pk_add_f32 {vr(Q0 + i, 2)}, {vr(Q0 + i, 2)}, {vr(Q0 + 8 + i, 2)}")
        A(f"v_pk_add_f32 {vr(Q0 + 16 + i, 2)}, {vr(Q0 + 16 + i, 2)}, {vr(Q0 + 24 + i, 2)}")
    for i in range(0, 8, 2):
        A(f"v_pk_add_f32 {vr(Q0 + i, 2)}, {vr(Q0 + i, 2)}, {vr(Q0 + 16 + i, 2)}")
    for i in range(4):
        A(f"v_cvt_pk_bf16_f32 v{QA+i}, v{Q0+2*i}, v{Q0+2*i+1}")
    for r in range(DA, DA + 8):
        A(f"v_mov_b32 v{r}, 0")
    stamp(0)
    if ts: A("s_getreg_b32 s85, hwreg(HW_REG_XCC_ID)")

    def softmax_tail(S, M, Lr, Dd):
        A("s_nop 1")
        A(f"v_permlane16_swap_b32 v{T1}, v{T2}")
        A(f"v_max_f32 v{T1}, v{T1}, v{T2}")
        A(f"v_mov_b32 v{T2}, v{T1}")
        A("s_nop 1")
        A(f"v_permlane32_swap_b32 v{T1}, v{T2}")
        A(f"v_max3_f32 v{MN}, v{T1}, v{T2}, v{M}")
        A(f"v_sub_f32 v{AL}, v{M}, v{MN}")
        for i, s in enumerate(S):
            A(f"v_sub_f32 v{PPv+i}, v{s}, v{MN}")
        A(f"v_exp_f32 v{AL}, v{AL}")
        for i in range(len(S)):
            A(f"v_exp_f32 v{PPv+i}, v{PPv+i}")
        A(f"v_mov_b32 v{M}, v{MN}")
        A(f"v_fma_f32 v{Lr}, v{Lr}, v{AL}, v{PPv}")
        for i in range(4):
            A(f"v_pk_mul_f32 {vr(Dd + 2 * i, 2)}, {vr(Dd + 2 * i, 2)}, {vr(AL, 2)} op_sel_hi:[1,0]")
        for i in range(1, len(S)):
            A(f"v_add_f32 v{Lr}, v{Lr}, v{PPv+i}")
    def qk_A(kb):
        for i in range(4):
            for u in range(4):
                if i == 0: A(f"v_dot2_f32_bf16 v{SS+u}, v{kb+4*u}, v{QA}, 0")
                else: A(f"v_dot2c_f32_bf16 v{SS+u}, v{kb+4*u+i}, v{QA+i}")
        bank_reduce([SS, SS + 1, SS + 2, SS + 3], UU, TT, TT + 1)
        A("s_nop 1")
        A(f"v_add_f32_dpp v{UU}, v{UU}, v{UU} quad_perm:[1,0,3,2] row_mask:0xf bank_mask:0xf")
        A("s_nop 1")
        A(f"v_add_f32_dpp v{UU}, v{UU}, v{UU} quad_perm:[2,3,0,1] row_mask:0xf bank_mask:0xf")
        round_scores([UU])
        A(f"v_mul_f32 v{SS}, s{S_C}, v{UU}")
        A(f"v_mul_f32 v{T1}, s{S_C}, v{UU}")
        A(f"v_mul_f32 v{T2}, s{S_C}, v{UU}")
        softmax_tail([SS], M_A, L_A, DA)
        A(f"v_cvt_pk_bf16_f32 v{T1}, v{PPv}, v{PPv}")
        for k in range(8):
            A(f"v_and_b32 v{BOP+k}, v{T1}, v{MA+k}")
    def pv(vb, Dd):
        for u in range(4):
            A(f"v_mfma_f32_16x16x16_bf16 {vr(Dd, 4)}, {vr(vb + 4 * u, 2)}, {vr(BOP + 2 * u, 2)}, {vr(Dd, 4)}")
            A(f"v_mfma_f32_16x16x16_bf16 {vr(Dd + 4, 4)}, {vr(vb + 4 * u + 2, 2)}, {vr(BOP + 2 * u, 2)}, {vr(Dd + 4, 4)}")
    def qk_B(kb):
        for u in range(4):
            for i in range(4):
                for h in range(4):
                    if i == 0: A(f"v_dot2_f32_bf16 v{SB+4*u+h}, v{kb+4*u}, v{QB+4*h}, 0")
                    else: A(f"v_dot2c_f32_bf16 v{SB+4*u+h}, v{kb+4*u+i}, v{QB+4*h+i}")
        for u in range(4):
            s = SB + 4 * u
            A(f"v_add_f32_dpp v{TT+2*u}, v{s}, v{s} row_ror:8 row_mask:0xf bank_mask:0x3")
            A(f"v_add_f32_dpp v{TT+2*u+1}, v{s+1}, v{s+1} row_ror:8 row_mask:0xf bank_mask:0x3")
            A(f"v_add_f32_dpp v{TT+2*u}, v{s+2}, v{s+2} row_ror:8 row_mask:0xf bank_mask:0xc")
            A(f"v_add_f32_dpp v{TT+2*u+1}, v{s+3}, v{s+3} row_ror:8 row_mask:0xf bank_mask:0xc")
        for u in range(4):
            A(f"v_add_f32_dpp v{UU+u}, v{TT+2*u}, v{TT+2*u} row_shl:4 row_mask:0xf bank_mask:0x5")
        for u in range(4):
            A(f"v_add_f32_dpp v{UU+u}, v{TT+2*u+1}, v{TT+2*u+1} row_shr:4 row_mask:0xf bank_mask:0xa")
        for u in range(4):
            A(f"v_add_f32_dpp v{UU+u}, v{UU+u}, v{UU+u} quad_perm:[1,0,3,2] row_mask:0xf bank_mask:0xf")
        for u in range(4):
            A(f"v_add_f32_dpp v{UU+u}, v{UU+u}, v{UU+u} quad_perm:[2,3,0,1] row_mask:0xf bank_mask:0xf")
        round_scores([UU, UU + 1, UU + 2, UU + 3])
        for u in range(4):
            A(f"v_mul_f32 v{SS+u}, s{S_C}, v{UU+u}")
        A(f"v_max3_f32 v{T1}, v{SS}, v{SS+1}, v{SS+2}")
        A(f"v_max_f32 v{T1}, v{T1}, v{SS+3}")
        A(f"v_mov_b32 v{T2}, v{T1}")
        softmax_tail([SS, SS + 1, SS + 2, SS + 3], M_B, L_B, DB)
        for u in range(4):
            A(f"v_cvt_pk_bf16_f32 v{SS+u}, v{PPv+u}, v{PPv+u}")
        for u in range(4):
            A(f"v_and_b32 v{BOP+2*u}, v{SS+u}, v{MB}")
            A(f"v_and_b32 v{BOP+2*u+1}, v{SS+u}, v{MB+1}")

    for t in range(PT):
        A(f"s_waitcnt vmcnt({(PT + D - 1 - t) * 4})")
        if t & 1:
            A("s_nop 0")
            pv(breg(t), DA)
        else:
            qk_A(breg(t))
    A(f"s_mov_b32 s{S_CNT}, {(64 - PT // 2) // PP - 1}")

    S_O, S_CH = 48, 50
    S_NX, S_RM = 56, 57
    A(f"s_mov_b32 s{S_RM}, 0")
    def issue_at(base, isV, sreg):
        s = SV if isV else SK
        for j in range(4):
            A(f"buffer_load_dwordx4 {vr(base + 4 * j, 4)}, v{V_OFF}, {sr(s, 4)}, s{sreg} offen offset:{j * 1024} {kvflags if fB is None else fB}")
    def claim():
        A(f"s_mov_b32 s{S_CL}, 1")
        A(f"s_atomic_add s{S_CL}, {sr(S_CA, 2)}, 0x0 glc")
    def dyn_step(t, tag, qk, Dd):
        A(f"s_waitcnt vmcnt({(D - 1) * 4})")
        ti = (t + D) % RB
        p = ti // 2
        if t & 1:
            if guided:
                A(f"s_cmp_lg_u32 s{S_RM}, 0")
                A(f"s_cbranch_scc1 L_have{tag}{t}")
                A("s_waitcnt lgkmcnt(0)")
                A(f"s_add_u32 s{S_T}, s{S_CL}, 1")
                A(f"s_add_u32 s{S_NX}, s{S_T}, 128")
                A(f"s_mov_b32 s{S_RM}, 1")
                A(f"s_cmp_ge_u32 s{S_T}, 64")
                A(f"s_cbranch_scc1 L_have{tag}{t}")
                A(f"s_and_b32 s{S_NX}, s{S_T}, 15")
                A(f"s_andn2_b32 s{S_RM}, s{S_T}, 15")
                A(f"s_cmp_ge_u32 s{S_T}, 32")
                A(f"s_cselect_b32 s{S_T}, 1, 2")
                A(f"s_lshl_b32 s{S_RM}, s{S_RM}, s{S_T}")
                A(f"s_add_u32 s{S_NX}, s{S_NX}, s{S_RM}")
                A(f"s_lshl_b32 s{S_RM}, 1, s{S_T}")
                A(f"s_cmp_eq_u32 s{S_T}, 1")
                A(f"s_cselect_b32 s{S_T}, 64, 0")
                A(f"s_add_u32 s{S_NX}, s{S_NX}, s{S_T}")
                A.label(f"L_have{tag}{t}")
                A(f"s_mov_b32 s{S_CH+p}, s{S_NX}")
                A(f"s_cmp_lt_u32 s{S_CH+p}, 256")
                A(f"s_cbranch_scc1 L_more{tag}{t}")
                A(f"s_mov_b32 s{SK+2}, 0")
                A(f"s_mov_b32 s{SV+2}, 0")
                A(f"s_branch L_ns{tag}{t}")
                A.label(f"L_more{tag}{t}")
                A(f"s_lshl_b32 s{S_O+p}, s{S_CH+p}, 12")
                A(f"s_add_u32 s{S_O+p}, s{S_O+p}, s{S_OFFB}")
                A(f"s_add_u32 s{S_NX}, s{S_NX}, 16")
                A(f"s_sub_u32 s{S_RM}, s{S_RM}, 1")
                A(f"s_cmp_lg_u32 s{S_RM}, 0")
                A(f"s_cbranch_scc1 L_ns{tag}{t}")
                claim()
                if ts: A("s_add_u32 s87, s87, 1")
            else:
                A("s_waitcnt lgkmcnt(0)")
                A(f"s_add_u32 s{S_CH+p}, s{S_CL}, 1")
                A(f"s_cmp_lt_u32 s{S_CH+p}, 256")
                A(f"s_cbranch_scc1 L_more{tag}{t}")
                A(f"s_mov_b32 s{SK+2}, 0")
                A(f"s_mov_b32 s{SV+2}, 0")
                A(f"s_branch L_ns{tag}{t}")
                A.label(f"L_more{tag}{t}")
                A(f"s_lshl_b32 s{S_O+p}, s{S_CH+p}, 12")
                A(f"s_add_u32 s{S_O+p}, s{S_O+p}, s{S_OFFB}")
                claim()
                if ts: A("s_add_u32 s87, s87, 1")
            A.label(f"L_ns{tag}{t}")
        if tag == "A" and t == 0:
            issue(RING + ti * 16, 1, 1)
            A(f"s_mov_b64 {sr(SK, 2)}, {sr(P_BK, 2)}")
            A(f"s_mov_b64 {sr(SV, 2)}, {sr(P_BV, 2)}")
            A(f"s_mov_b32 s{SK+2}, {64 << 20}")
            A(f"s_mov_b32 s{SV+2}, {64 << 20}")
            A(f"v_lshlrev_b32 v{V_OFF}, 4, v{V_LANE}")
        else:
            issue_at(RING + ti * 16, ti & 1, S_O + p)
        if t & 1: pv(RING + t * 16, Dd)
        else: qk(RING + t * 16)
    assert D == 3
    A.label("L_loopA")
    for t in range(RB):
        A(f"s_waitcnt vmcnt({(D - 1) * 4})")
        ti = t + D
        if ti == RB:
            A(f"s_add_u32 s{S_OFF}, s{S_OFF}, {PP * 16384}")
            if rot58:
                A(f"s_and_b32 s{S_OFF}, s{S_OFF}, 0xfffff")
                A(f"s_or_b32 s{S_OFF}, s{S_OFF}, s54")
            for _ in range(xat):
                A("s_mov_b32 s55, 1")
                A(f"s_atomic_add s55, {sr(S_CA, 2)}, 64")
            A(f"s_cmp_lg_u32 s{S_CNT}, {barit}")
            A("s_cbranch_scc1 L_nb")
            A("s_barrier")
            A.label("L_nb")
            A(f"s_cmp_lg_u32 s{S_CNT}, 1")
            A("s_cbranch_scc1 L_nsA")
            claim()
            A.label("L_nsA")
        issue(RING + (ti % RB) * 16, ti & 1, (ti % RB) // 2)
        if t & 1: pv(RING + t * 16, DA)
        else: qk_A(RING + t * 16)
    A(f"s_sub_u32 s{S_CNT}, s{S_CNT}, 1")
    A(f"s_cmp_lg_u32 s{S_CNT}, 0")
    A("s_cbranch_scc1 L_loopA")
    for t in range(RB): dyn_step(t, "A", qk_A, DA)
    A.c("---- end of A: merge the 4 banks, partial to LDS")
    stamp(2)
    A(f"v_max_f32_dpp v{T1}, v{M_A}, v{M_A} row_ror:4 row_mask:0xf bank_mask:0xf")
    A(f"v_or_b32 v{MB}, v{MA}, v{MA+2}")
    A(f"v_or_b32 v{MB+1}, v{MA+1}, v{MA+3}")
    A(f"v_max_f32_dpp v{T1}, v{T1}, v{T1} row_ror:8 row_mask:0xf bank_mask:0xf")
    A(f"v_sub_f32 v{AL}, v{M_A}, v{T1}")
    A(f"v_exp_f32 v{AL}, v{AL}")
    A(f"ds_write_b32 v{VML}, v{T1} offset:{L_MLA}")
    A(f"v_mul_f32 v{L_A}, v{L_A}, v{AL}")
    for i in range(4):
        A(f"v_pk_mul_f32 {vr(DA + 2 * i, 2)}, {vr(DA + 2 * i, 2)}, {vr(AL, 2)} op_sel_hi:[1,0]")
    A(f"v_add_f32_dpp v{L_A}, v{L_A}, v{L_A} row_ror:4 row_mask:0xf bank_mask:0xf")
    bank_reduce([DA, DA + 1, DA + 2, DA + 3], UU, TT, TT + 1)
    A(f"v_add_f32_dpp v{L_A}, v{L_A}, v{L_A} row_ror:8 row_mask:0xf bank_mask:0xf")
    A(f"ds_write_b32 v{VPA}, v{UU} offset:{L_PA}")
    A(f"v_mov_b32 v{T2}, v{L_A}")
    bank_reduce([DA + 4, DA + 5, DA + 6, DA + 7], UU + 1, TT + 2, TT + 3)
    A(f"v_permlane16_swap_b32 v{L_A}, v{T2}")
    A(f"ds_write_b32 v{VPA}, v{UU+1} offset:{L_PA + 16}")
    A(f"v_add_f32 v{L_A}, v{L_A}, v{T2}")
    A(f"v_mov_b32 v{T2}, v{L_A}")
    A(f"v_or3_b32 v{MB}, v{MB}, v{MA+4}, v{MA+6}")
    A(f"v_or3_b32 v{MB+1}, v{MB+1}, v{MA+5}, v{MA+7}")
    A(f"v_permlane32_swap_b32 v{L_A}, v{T2}")
    A(f"v_add_f32 v{L_A}, v{L_A}, v{T2}")
    A(f"ds_write_b32 v{VML}, v{L_A} offset:{L_MLA + 16}")
    A(f"v_lshrrev_b32 v{T1}, 1, v{VADDR}")
    A(f"v_mov_b32 v{M_B}, 0xff7fffff")
    for r in [L_B] + list(range(DB, DB + 8)):
        A(f"v_mov_b32 v{r}, 0")
    A("s_waitcnt lgkmcnt(0)")
    A("s_barrier")
    for h in range(4):
        A(f"ds_read_b128 {vr(QB + 4 * h, 4)}, v{T1} offset:{L_QB + h * 256}")
    A("s_waitcnt lgkmcnt(0)")
    stamp(3)
    A(f"s_cmp_lt_u32 s{S_CH}, 256")
    A("s_cbranch_scc0 L_finB")
    A.label("L_loopB")
    for t in range(RB):
        dyn_step(t, "B", qk_B, DB)
        if t & 1:
            A(f"s_cmp_lt_u32 s{S_CH + (1 if t == 1 else 0)}, 256")
            A("s_cbranch_scc0 L_finB" if t == 1 else "s_cbranch_scc1 L_loopB")
    A.label("L_finB")
    A.c("---- end of B: partials to LDS")
    A(f"v_mov_b32 v{T1}, v{L_B}")
    A(f"v_mov_b32 v{T2}, v{L_B}")
    A(f"ds_write_b32 v{VMB}, v{M_B} offset:{L_MLB}")
    A("s_nop 0")
    A(f"v_permlane16_swap_b32 v{T1}, v{T2}")
    A(f"v_add_f32 v{T1}, v{T1}, v{T2}")
    A(f"v_mov_b32 v{T2}, v{T1}")
    for r in range(4):
        A(f"ds_write_b32 v{VPB}, v{DB+r} offset:{L_PB + r * 32}")
        A(f"ds_write_b32 v{VPB}, v{DB+4+r} offset:{L_PB + r * 32 + 16}")
    A(f"v_permlane32_swap_b32 v{T1}, v{T2}")
    A(f"v_add_f32 v{T1}, v{T1}, v{T2}")
    A(f"ds_write_b32 v{VMB}, v{T1} offset:{L_MLB + 16}")
    A("s_waitcnt lgkmcnt(0)")
    if dry: A("s_cbranch_execz L_dryret")
    stamp(8)
    A("s_barrier")
    flush_stamps()
    A("s_endpgm")

    A.label("L_helper")
    inhelper[0] = True
    A.c("---------------- helper ----------------")
    HW = 62
    H_OQ, H_LANE, H_OO, H_OX, H_E, H_L16 = 1, 2, 3, 4, 6, 7
    H_MA, H_XQ, H_XB, H_D, H_B, H_T = 8, 108, 20, 28, 36, 44
    ML, F = H_T + 8, H_T + 16
    MM, LL = H_T + 20, H_T + 21
    PO = H_T + 24
    VP, VS1, VM, VY, VNAN, VS2, VS3, VSL = 100, 101, 102, 103, 104, 105, 16, 17
    RA, RO = 120, 124
    VD, VT, VOW, VOR, DD, AO = 126, 20, 3, 5, 68, 28
    YS, SQ = 112, 116
    W0 = 128
    R_X, R_W = 32, 36
    S_SEL0, S_SEL1, S_BASE, S_T2, S_I, S_PH2, S_XO, S_SL = 40, 41, 53, 43, 44, 45, 46, 49
    S_BA, S_PV = 54, 64
    if hprio: A(f"s_setprio {hprio}")
    if dbgts: stamp(10)
    A(f"s_sub_u32 s{HW}, s3, 4")
    A(f"v_lshlrev_b32 v{H_L16}, 4, v{H_LANE}")
    A(f"s_lshl_b32 s{S_SL}, s2, 2")
    A(f"s_add_u32 s{S_SL}, s{S_SL}, s{HW}")
    A(f"s_lshl_b32 s{S_SL}, s{S_SL}, 10")
    A(f"v_add_u32 v{VSL}, s{S_SL}, v{H_L16}")
    A(f"v_add_u32 v{VY}, {W_Y}, v{VSL}")
    A(f"s_lshr_b32 s{S_I}, s{S_SL}, 4")
    A(f"s_add_u32 s{S_I}, s{S_I}, {W_QB - 960}")
    A(f"v_add_u32 v{H_T+9}, s{S_I}, v{H_L16}")
    A(f"v_cmp_gt_u32 vcc, 60, v{H_LANE}")
    for i in range(4): A(f"v_mov_b32 v{SQ+i}, -1")
    A(f"v_cndmask_b32 v{H_T+9}, v{H_T+9}, v{VSL}, vcc")
    A(f"s_lshr_b32 s{S_I}, s2, 2")
    A(f"s_mul_i32 s{S_I}, s{S_I}, {cts}")
    A(f"s_add_u32 s{S_I}, s{S_I}, {W_CT}")
    A(f"v_writelane_b32 v{H_T+9}, s{S_I}, 40")
    A(f"s_or_b32 s{S_I}, s{S_S}, s{HW}")
    A(f"s_cmp_eq_u32 s{S_I}, 0")
    A(f"s_cselect_b32 s{S_T2}, 0x100, 0")
    A(f"s_or_b32 s{S_T2}, s{S_T2}, 0xf000000f")
    A(f"v_lshrrev_b32 v{H_OX}, 2, v{H_LANE}")
    A(f"v_lshlrev_b32 v{H_OX}, 4, v{H_OX}")
    A(f"v_and_b32 v{H_T}, 15, v{H_LANE}")
    A(f"v_lshlrev_b32 v{H_T}, 4, v{H_T}")
    A(f"v_lshrrev_b32 v{H_T+1}, 4, v{H_LANE}")
    A(f"v_lshl_add_u32 v{H_OQ}, v{H_T+1}, 18, v{H_T}")
    A(f"s_mov_b32 s{R_X+2}, 8192")
    A(f"s_mov_b32 s{R_X+3}, 0x00020000")
    A(f"s_mov_b32 s{R_W+2}, {0 if now else 4 << 20}")
    A(f"s_mov_b32 s{R_W+3}, 0x00020000")
    A(f"s_lshl_b32 s{S_XO}, s{S_B}, 10")
    A(f"s_lshl_b32 s{S_I}, s{HW}, 8")
    A(f"s_add_u32 s{S_XO}, s{S_XO}, s{S_I}")
    A(f"s_lshl_b32 s{S_BASE}, s{HW}, 20")
    A(f"s_lshl_b32 s{S_I}, s{S_H}, 8")
    A(f"s_add_u32 s{S_BASE}, s{S_BASE}, s{S_I}")
    A("s_waitcnt lgkmcnt(0)")
    A(f"s_mov_b64 {sr(R_X, 2)}, {sr(P_AX, 2)}")
    A(f"s_mov_b64 {sr(R_W, 2)}, {sr(P_AWQ, 2)}")

    def wload_grp(grp, stride, voff, flags):
        for u in range(4):
            off = (8 * u + grp) * stride
            rg = W0 + (grp * 4 + u) * 4
            imm = off & 4095 if stride == 1024 else 0
            so = off - imm
            if so:
                A(f"s_add_u32 s{S_I}, s{S_BASE}, {so}")
            A(f"buffer_load_dwordx4 {vr(rg, 4)}, v{voff}, {sr(R_W, 4)}, s{S_I if so else S_BASE} offen offset:{imm} {flags}")
    def gemv_grp(grp):
        for k in range(8):
            A(f"v_and_b32 v{H_B+k}, v{H_XB+grp}, v{H_MA+k}")
        for u in range(4):
            rg = W0 + (grp * 4 + u) * 4
            A(f"v_mfma_f32_16x16x16_bf16 {vr(H_D, 4)}, {vr(rg, 2)}, {vr(H_B + 2 * u, 2)}, {vr(H_D, 4)}")
            A(f"v_mfma_f32_16x16x16_bf16 {vr(H_D + 4, 4)}, {vr(rg + 2, 2)}, {vr(H_B + 2 * u, 2)}, {vr(H_D + 4, 4)}")
    def xb_from_xq():
        for grp in range(8):
            A(f"v_perm_b32 v{H_XB+grp}, v{H_XQ+grp//2}, v{H_XQ+grp//2}, s{S_SEL1 if grp & 1 else S_SEL0}")
    def zero_D():
        for i in range(8): A(f"v_mov_b32 v{H_D+i}, 0")
    def reduce_D(ulo, uhi):
        A("s_nop 7")
        bank_reduce([H_D, H_D + 1, H_D + 2, H_D + 3], ulo, H_T + 2, H_T + 3)
        bank_reduce([H_D + 4, H_D + 5, H_D + 6, H_D + 7], uhi, H_T + 4, H_T + 5)
    def sanitize(regs, nanreg):
        for i, r in enumerate(regs):
            A(f"v_cmp_eq_u32 {sr(S_PV + 2 * i, 2)}, -1, v{r}")
        for i, r in enumerate(regs):
            A(f"v_cndmask_b32 v{r}, v{r}, v{nanreg}, {sr(S_PV + 2 * i, 2)}")
    def gather(tag, loads, slp_many, slp_few, thr):
        A(f"s_mov_b64 s[56:57], exec")
        A(f"s_mov_b32 s{S_I}, {spinmax}")
        A.label(f"L_g{tag}")
        for dst, va in loads:
            A(f"global_load_dwordx4 {vr(dst, 4)}, v{va}, {sr(P_WS, 2)} sc1")
        A(f"s_sub_u32 s{S_I}, s{S_I}, 1")
        A(f"s_cbranch_scc1 L_gx{tag}")
        for n, (dst, va) in enumerate(loads):
            A(f"s_waitcnt vmcnt({len(loads) - 1 - n})")
            if n == 0:
                A(f"v_max3_u32 v{H_T}, v{dst}, v{dst+1}, v{dst+2}")
                A(f"v_max_u32 v{H_T}, v{H_T}, v{dst+3}")
            else:
                A(f"v_max3_u32 v{H_T}, v{H_T}, v{dst}, v{dst+1}")
                A(f"v_max3_u32 v{H_T}, v{H_T}, v{dst+2}, v{dst+3}")
        A(f"v_cmp_eq_u32 vcc, -1, v{H_T}")
        A("s_nop 0")
        A(f"s_cbranch_vccz L_gx{tag}")
        A("s_mov_b64 exec, vcc")
        if slp_many != slp_few:
            A(f"s_bcnt1_i32_b64 s{S_T2}, vcc")
            A(f"s_cmp_gt_u32 s{S_T2}, {thr}")
            A(f"s_cbranch_scc1 L_gl{tag}")
            A(f"s_sleep {slp_few}")
            A(f"s_branch L_g{tag}")
            A.label(f"L_gl{tag}")
        A(f"s_sleep {slp_many}")
        A(f"s_branch L_g{tag}")
        A.label(f"L_gx{tag}")
        A("s_mov_b64 exec, s[56:57]")
        A("s_waitcnt vmcnt(0)")
    def wo_stage(ptr, s_head):
        A(f"s_mov_b64 {sr(R_W, 2)}, {sr(ptr, 2)}")
        A(f"s_lshl_b32 s{S_BASE}, s{s_head}, 17")
        A(f"s_lshl_b32 s{S_I}, s{HW}, 8")
        A(f"s_add_u32 s{S_BASE}, s{S_BASE}, s{S_I}")
        A(f"s_lshl_b32 s{S_T2}, s{HW}, 15")
        A(f"s_add_u32 s{S_T2}, s{S_T2}, {L_WO}")
        for n in range(32):
            A(f"s_add_u32 m0, s{S_T2}, {n * 1024}")
            A(f"s_add_u32 s{S_I}, s{S_BASE}, {n * 4096}")
            A(f"buffer_load_dwordx4 v{VD + ((n >> 1) & 1)}, {sr(R_W, 4)}, s{S_I} offen {wflags} lds")
            if n % 8 == 7: A(f"s_waitcnt vmcnt({wot})")
    def wo_fetch():
        for ct in range(8):
            for st in range(4):
                for h in range(2):
                    rg = W0 + (ct * 4 + st) * 4 + 2 * h
                    A(f"ds_read_b64_tr_b16 {vr(rg, 2)}, v{VT + ct} offset:{(32 * st + 4 * h) * 256}")
            if ct & 1: A("s_waitcnt lgkmcnt(0)")
    def merge_factors(normalize):
        A(f"v_max3_f32 v{MM}, v{ML}, v{ML+1}, v{ML+2}")
        A(f"v_max_f32 v{MM}, v{MM}, v{ML+3}")
        for i in range(4): A(f"v_sub_f32 v{F+i}, v{ML+i}, v{MM}")
        for i in range(4): A(f"v_exp_f32 v{F+i}, v{F+i}")
        A("s_nop 0")
        A(f"v_mul_f32 v{LL}, v{F}, v{ML+4}")
        for i in range(1, 4): A(f"v_fmac_f32 v{LL}, v{F+i}, v{ML+4+i}")
        if normalize:
            A(f"v_rcp_f32 v{LL}, v{LL}")
            A("s_nop 0")
            for i in range(4): A(f"v_mul_f32 v{F+i}, v{F+i}, v{LL}")
    def merge_vals(n):
        for t in range(n): A(f"v_mul_f32 v{PO+t}, v{F}, v{PO+t}")
        for w in range(1, 4):
            for t in range(n): A(f"v_fmac_f32 v{PO+t}, v{F+w}, v{PO+w*n+t}")

    A.c("mark every hand-off slot of this workgroup as not yet written (the chunk counters start at -1 too)")
    A(f"global_store_dwordx4 v{VY}, {vr(SQ, 4)}, {sr(P_WS, 2)} sc1")
    A(f"s_mov_b32 exec_hi, s{S_T2}")
    A(f"global_store_dwordx4 v{H_T+9}, {vr(SQ, 4)}, {sr(P_WS, 2)} sc1")
    A("s_mov_b64 exec, -1")
    A(f"buffer_load_dwordx4 {vr(H_XQ, 4)}, v{H_OX}, {sr(R_X, 4)}, s{S_XO} offen")
    for grp in range(8): wload_grp(grp, 8192, H_OQ, wflags)
    A("s_barrier")
    build_masks(H_MA, H_LANE, H_T)
    A(f"s_mov_b32 s{S_SEL0}, 0x01000100")
    A(f"s_mov_b32 s{S_SEL1}, 0x03020302")
    zero_D()
    A(f"v_bfe_u32 v{H_T}, v{H_LANE}, 2, 2")
    A(f"v_lshrrev_b32 v{H_T+1}, 4, v{H_LANE}")
    A(f"v_and_b32 v{H_E}, 3, v{H_LANE}")
    A(f"v_lshl_add_u32 v{H_E}, v{H_T}, 3, v{H_E}")
    A(f"v_lshl_add_u32 v{H_E}, v{H_T+1}, 5, v{H_E}")
    A(f"s_lshl_b32 s{S_I}, s{HW}, 9")
    A(f"v_lshlrev_b32 v{H_E}, 2, v{H_E}")
    A(f"v_add_u32 v{H_E}, s{S_I}, v{H_E}")
    A(f"v_mov_b32 v{H_T}, 0")
    A(f"v_mov_b32 v{H_T+1}, {L_CNT}")
    A(f"ds_write_b32 v{H_T+1}, v{H_T}")
    A("s_waitcnt vmcnt(32)")
    xb_from_xq()
    for grp in range(8):
        A(f"s_waitcnt vmcnt({(7 - grp) * 4})")
        gemv_grp(grp)
    reduce_D(H_T, H_T + 1)
    A(f"ds_write_b32 v{H_E}, v{H_T} offset:{L_QA}")
    A(f"ds_write_b32 v{H_E}, v{H_T+1} offset:{L_QA + 16}")
    A("s_waitcnt lgkmcnt(0)")
    A("s_barrier")
    stamp(0)
    A.c("---- q_B of head hq, published to the 4 sibling workgroups")
    for _ in range(qbsleep): A("s_sleep 127")
    A(f"s_mov_b64 {sr(R_X, 2)}, {sr(P_BX, 2)}")
    A(f"s_mov_b64 {sr(R_W, 2)}, {sr(P_BWQ, 2)}")
    A(f"s_lshl_b32 s{S_BASE}, s{HW}, 20")
    A(f"s_lshl_b32 s{S_I}, s{S_HQ}, 8")
    A(f"s_add_u32 s{S_BASE}, s{S_BASE}, s{S_I}")
    zero_D()
    A(f"buffer_load_dwordx4 {vr(H_XQ, 4)}, v{H_OX}, {sr(R_X, 4)}, s{S_XO} offen")
    for grp in range(qbPD): wload_grp(grp, 8192, H_OQ, wflags)
    A(f"s_lshl_b32 s{S_I}, s{S_B}, 5")
    A(f"s_add_u32 s{S_BA}, s{P_DBG}, s{S_I}")
    A(f"s_addc_u32 s{S_BA+1}, s{P_DBG+1}, 0")
    A(f"s_lshl_b32 s{S_I}, s{S_B}, 10")
    A(f"s_add_u32 s{S_I}, s{S_I}, s{S_HQ}")
    A(f"s_lshl_b32 s{S_I}, s{S_I}, 7")
    A(f"s_add_u32 s{S_I}, s{S_I}, {W_Y}")
    A(f"v_lshrrev_b32 v{RA}, 3, v{H_LANE}")
    A(f"v_lshlrev_b32 v{RA}, 12, v{RA}")
    A(f"v_and_b32 v{H_T}, 7, v{H_LANE}")
    A(f"v_lshl_add_u32 v{RA}, v{H_T}, 4, v{RA}")
    A(f"v_add_u32 v{RA}, s{S_I}, v{RA}")
    for i in range(1, 4): A(f"v_add_u32 v{RA+i}, {i * 32768}, v{RA}")
    A(f"v_and_b32 v{RO}, 7, v{H_LANE}")
    A(f"v_bfe_u32 v{H_T}, v{H_LANE}, 4, 1")
    A(f"v_lshl_add_u32 v{RO}, v{H_T}, 4, v{RO}")
    A(f"v_bfe_u32 v{H_T}, v{H_LANE}, 3, 1")
    A(f"v_lshl_add_u32 v{RO}, v{H_T}, 9, v{RO}")
    A(f"s_lshr_b32 s{S_I}, s{S_HQ}, 1")
    A(f"s_lshl_b32 s{S_I}, s{S_I}, 5")
    A(f"s_and_b32 s{S_T2}, s{S_HQ}, 1")
    A(f"s_lshl_b32 s{S_T2}, s{S_T2}, 3")
    A(f"s_add_u32 s{S_I}, s{S_I}, s{S_T2}")
    A(f"s_lshl_b32 s{S_T2}, s{S_B}, 10")
    A(f"s_add_u32 s{S_I}, s{S_I}, s{S_T2}")
    A(f"v_add_lshl_u32 v{RO}, v{RO}, s{S_I}, 1")
    A(f"v_lshlrev_b32 v{VP}, 3, v{H_LANE}")
    A(f"v_mov_b32 v{VM}, 0")
    A(f"v_mov_b32 v{VNAN}, 0x7fc07fc0")
    A(f"s_lshl_b32 s{S_I}, s{HW}, 9")
    A(f"v_add_u32 v{VS1}, s{S_I}, v{H_L16}")
    A(f"s_lshl_b32 s{S_I}, s{HW}, 5")
    A(f"v_mov_b32 v{VS2}, s{S_I}")
    A(f"s_andn2_b32 s{S_I}, s2, 3")
    A(f"s_add_u32 s{S_I}, s{S_I}, s{HW}")
    A(f"s_lshl_b32 s{S_I}, s{S_I}, 2")
    A(f"s_add_u32 s{S_I}, s{S_I}, s{S_S}")
    A(f"s_lshl_b32 s{S_I}, s{S_I}, 10")
    A(f"v_add_u32 v{VS3}, s{S_I}, v{H_L16}")
    A(f"s_mul_i32 s{S_I}, s{HW}, 640")
    A(f"v_add_u32 v{RO+1}, s{S_I}, v{H_L16}")
    A(f"s_waitcnt vmcnt({qbPD * 4})")
    xb_from_xq()
    for grp in range(8):
        A(f"s_waitcnt vmcnt({(min(qbPD, 8 - grp) - 1) * 4})")
        if grp + qbPD < 8: wload_grp(grp + qbPD, 8192, H_OQ, wflags)
        gemv_grp(grp)
    reduce_D(H_T, H_T + 1)
    A(f"ds_write_b32 v{H_E}, v{H_T} offset:{L_Q2}")
    A(f"ds_write_b32 v{H_E}, v{H_T+1} offset:{L_Q2 + 16}")
    A(f"v_mov_b32 v{H_T+2}, {L_CNT}")
    A(f"v_mov_b32 v{H_T+3}, 1")
    A("s_waitcnt lgkmcnt(0)")
    A("s_mov_b64 exec, 1")
    A(f"ds_add_rtn_u32 v{H_T+4}, v{H_T+2}, v{H_T+3}")
    A("s_mov_b64 exec, -1")
    A("s_waitcnt lgkmcnt(0)")
    A(f"v_readfirstlane_b32 s{S_T2}, v{H_T+4}")
    A(f"s_cmp_lg_u32 s{S_T2}, 3")
    A("s_cbranch_scc1 L_noq")
    A.c("the last of the 4 waves sums the partials, publishes q_B and raises the 'slots are marked' flag")
    A(f"v_lshlrev_b32 v{H_T}, 1, v{H_L16}")
    A(f"v_mov_b32 v{H_T+8}, s2")
    A("s_mov_b64 exec, 0xffff")
    for w in range(4):
        A(f"ds_read_b128 {vr(PO + 8 * w, 4)}, v{H_T} offset:{L_Q2 + w * 512}")
        A(f"ds_read_b128 {vr(PO + 8 * w + 4, 4)}, v{H_T} offset:{L_Q2 + w * 512 + 16}")
    A(f"s_lshl_b32 s{S_I}, s2, 8")
    A(f"s_add_u32 s{S_I}, s{S_I}, {W_QB}")
    A(f"v_add_u32 v{H_T+1}, s{S_I}, v{H_L16}")
    A("s_waitcnt lgkmcnt(0)")
    for i in range(0, 8, 2):
        A(f"v_pk_add_f32 {vr(PO + i, 2)}, {vr(PO + i, 2)}, {vr(PO + 8 + i, 2)}")
        A(f"v_pk_add_f32 {vr(PO + 16 + i, 2)}, {vr(PO + 16 + i, 2)}, {vr(PO + 24 + i, 2)}")
    for i in range(0, 8, 2):
        A(f"v_pk_add_f32 {vr(PO + i, 2)}, {vr(PO + i, 2)}, {vr(PO + 16 + i, 2)}")
    for i in range(4):
        A(f"v_cvt_pk_bf16_f32 v{SQ+i}, v{PO+2*i}, v{PO+2*i+1}")
    sanitize([SQ, SQ + 1, SQ + 2, SQ + 3], VNAN)
    A(f"global_store_dwordx4 v{H_T+1}, {vr(SQ, 4)}, {sr(P_WS, 2)} sc1")
    A("s_mov_b64 exec, 1")
    A(f"global_store_byte v{H_T+8}, v{H_T+3}, {sr(P_DBG, 2)} sc1")
    A("s_mov_b64 exec, -1")
    A.label("L_noq")
    stamp(14)
    A(f"v_lshrrev_b32 v{H_T}, 4, v{H_LANE}")
    A(f"v_bfe_u32 v{H_T+1}, v{H_LANE}, 1, 3")
    A(f"v_xor_b32 v{H_T+1}, v{H_T+1}, v{H_T}")
    A(f"v_and_b32 v{H_T+2}, 1, v{H_LANE}")
    A(f"v_lshlrev_b32 v{H_T+2}, 4, v{H_T+2}")
    A(f"v_lshl_add_u32 v{H_T+2}, v{H_T}, 10, v{H_T+2}")
    A(f"v_lshl_add_u32 v{VD}, v{H_T+1}, 5, v{H_T+2}")
    A(f"v_xor_b32 v{VD+1}, 128, v{VD}")
    A(f"v_bfe_u32 v{H_T+1}, v{H_LANE}, 2, 2")
    A(f"v_lshl_add_u32 v{H_T+2}, v{H_T}, 3, v{H_T+1}")
    A(f"v_lshlrev_b32 v{H_T+2}, 8, v{H_T+2}")
    A(f"v_and_b32 v{H_T+3}, 3, v{H_LANE}")
    A(f"v_lshl_add_u32 v{H_T+2}, v{H_T+3}, 3, v{H_T+2}")
    A(f"s_lshl_b32 s{S_I}, s{HW}, 15")
    A(f"s_add_u32 s{S_I}, s{S_I}, {L_WO}")
    A(f"v_add_u32 v{H_T+2}, s{S_I}, v{H_T+2}")
    A(f"v_bfe_u32 v{H_T+3}, v{H_LANE}, 2, 3")
    for ct in range(8):
        A(f"v_xor_b32 v{H_T+4}, {ct}, v{H_T+3}")
        A(f"v_lshl_add_u32 v{VT+ct}, v{H_T+4}, 5, v{H_T+2}")
    A(f"s_lshl_b32 s{S_I}, s{HW}, 8")
    A(f"s_add_u32 s{S_I}, s{S_I}, {L_OS}")
    A(f"v_lshlrev_b32 v{VOW}, 2, v{H_LANE}")
    A(f"v_add_u32 v{VOW}, s{S_I}, v{VOW}")
    A(f"v_lshlrev_b32 v{VOR}, 4, v{H_T}")
    A(f"v_add_u32 v{VOR}, s{S_I}, v{VOR}")
    wo_stage(P_AWO, S_H)
    A("s_waitcnt vmcnt(0)")
    wo_fetch()
    wo_stage(P_BWO, S_HQ)
    stamp(15)
    if tlb:
        A.c("touch the pages used later (address-translation warm-up)")
        A(f"s_lshr_b32 s{S_I}, s2, 2")
        A(f"s_lshl_b32 s{S_I}, s{S_I}, 20")
        A(f"v_mov_b32 v{H_T+8}, s{S_I}")
        A(f"s_lshl_b32 s{S_I}, s{S_HQ}, 17")
        A(f"v_mov_b32 v{H_T+9}, s{S_I}")
        A(f"s_cmp_lg_u32 s{HW}, 2")
        A("s_cbranch_scc1 L_notlb")
        A("s_mov_b64 exec, 1")
        A(f"global_load_dword v{H_T+10}, v{H_T+8}, {sr(P_BK, 2)} nt")
        A(f"global_load_dword v{H_T+11}, v{H_T+8}, {sr(P_BV, 2)} nt")
        A("s_mov_b64 exec, -1")
        A.label("L_notlb")
    A(f"s_cmp_lg_u32 s{HW}, 0")
    A("s_cbranch_scc1 L_qbdone")
    for _ in range(zsleep): A("s_sleep 127")
    A.c("every workgroup of this batch has marked its slots")
    A(f"s_mov_b32 s{S_I}, {spinmax}")
    A("s_branch L_z1")
    A.label("L_z")
    A(f"s_sleep {sleep}")
    A.label("L_z1")
    A(f"s_load_dwordx8 {sr(S_PV, 8)}, {sr(S_BA, 2)}, 0x0 glc")
    A(f"s_sub_u32 s{S_I}, s{S_I}, 1")
    A("s_waitcnt lgkmcnt(0)")
    A("s_cbranch_scc1 L_zx")
    A(f"s_and_b64 {sr(S_PV, 2)}, {sr(S_PV, 2)}, {sr(S_PV + 2, 2)}")
    A(f"s_and_b64 {sr(S_PV + 4, 2)}, {sr(S_PV + 4, 2)}, {sr(S_PV + 6, 2)}")
    A(f"s_and_b64 {sr(S_PV, 2)}, {sr(S_PV, 2)}, {sr(S_PV + 4, 2)}")
    A(f"s_and_b32 s{S_PV}, s{S_PV}, s{S_PV+1}")
    A(f"s_cmp_lg_u32 s{S_PV}, 0x01010101")
    A("s_cbranch_scc1 L_z")
    A.label("L_zx")
    A(f"s_andn2_b32 s{S_I}, s2, 3")
    A(f"s_lshl_b32 s{S_I}, s{S_I}, 8")
    A(f"s_add_u32 s{S_I}, s{S_I}, {W_QB}")
    A(f"v_add_u32 v{H_T+1}, s{S_I}, v{H_L16}")
    gather("q", [(PO, H_T + 1)], sleep, sleep, 0)
    A(f"ds_write_b128 v{H_L16}, {vr(PO, 4)} offset:{L_QB}")
    A.label("L_qbdone")
    A("s_waitcnt lgkmcnt(0)")
    X_ALL, X_33, X_32 = 66, 68, 70
    if dry2:
        A.c("instruction-cache / TLB warm-up: wave 0 walks the final code with no lane active")
        A(f"global_load_ushort v{H_T+8}, v{RO}, {sr(P_OUT, 2)}")
        for x in (X_ALL, X_33, X_32): A(f"s_mov_b64 {sr(x + 8, 2)}, 0")
        A(f"s_cmp_lg_u32 s{HW}, 0")
        A("s_cbranch_scc1 L_dryret2")
        A("s_mov_b64 exec, 0")
        A("s_branch L_stage1")
        A.label("L_dryret2")
    if dry:
        A(f"s_cmp_lg_u32 s{HW}, 1")
        A("s_cbranch_scc1 L_dryret")
        A("s_mov_b64 exec, 0")
        A("s_branch L_finB")
        A.label("L_dryret")
    A("s_mov_b64 exec, -1")
    A(f"s_mov_b64 {sr(X_ALL + 8, 2)}, -1")
    A(f"s_mov_b32 s{X_33 + 8}, -1")
    A(f"s_mov_b32 s{X_33 + 9}, 1")
    A(f"s_mov_b32 s{X_32 + 8}, 0")
    A(f"s_mov_b32 s{X_32 + 9}, 1")
    A(f"s_mov_b32 s{S_PH2}, 0")
    A("s_waitcnt vmcnt(0) lgkmcnt(0)")
    stamp(1)
    A("s_barrier")
    A("s_barrier")
    stamp(2)
    A(f"ds_read_b128 {vr(ML, 4)}, v{VM} offset:{L_MLA}")
    A(f"ds_read_b128 {vr(ML + 4, 4)}, v{VM} offset:{L_MLA + 16}")
    for w in range(4):
        A(f"ds_read_b64 {vr(PO + 2 * w, 2)}, v{VP} offset:{L_PA + w * 512}")
    A("s_waitcnt lgkmcnt(4)")
    A.label("L_project")
    A.c("---- shared by A and B: merge 4 partials, normalise, project")
    merge_factors(True)
    A("s_waitcnt lgkmcnt(0)")
    merge_vals(2)
    A(f"v_cvt_pk_bf16_f32 v{PO}, v{PO}, v{PO+1}")
    A(f"ds_write_b32 v{VOW}, v{PO}")
    A("s_waitcnt lgkmcnt(0)")
    for st in range(4):
        A(f"ds_read_b128 {vr(AO + 4 * st, 4)}, v{VOR} offset:{64 * st}")
    for st in range(4):
        A(f"s_waitcnt lgkmcnt({3 - st})")
        for ct in range(8):
            c = "0" if st == 0 else vr(DD + 4 * ct, 4)
            A(f"v_mfma_f32_16x16x32_bf16 {vr(DD + 4 * ct, 4)}, {vr(AO + 4 * st, 4)}, {vr(W0 + (ct * 4 + st) * 4, 4)}, {c}")
    A("s_nop 2")
    A(f"s_cmp_lg_u32 s{S_PH2}, 0")
    A("s_cbranch_scc1 L_tail")
    def pick(dst):
        for ct in range(8):
            A(f"v_mov_b32_dpp v{dst + (ct & 1)}, v{DD + 4 * ct} quad_perm:[0,1,2,3] row_mask:{1 << (ct >> 1):#x} bank_mask:0xf")
    pick(YS)
    stamp(3)
    wo_fetch()
    A(f"s_mov_b32 s{S_PH2}, 1")
    stamp(13)
    A("s_barrier")
    A.label("L_stage1")
    A.c("---- B stage 1: merge head hw over the 4 streamer waves, publish (o[128], m, l)")
    A(f"ds_read_b128 {vr(ML, 4)}, v{VS2} offset:{L_MLB}")
    A(f"ds_read_b128 {vr(ML + 4, 4)}, v{VS2} offset:{L_MLB + 16}")
    for w in range(4):
        A(f"ds_read_b128 {vr(PO + 4 * w, 4)}, v{VS1} offset:{L_PB + w * 2048}")
    stamp(4)
    A("s_waitcnt lgkmcnt(0)")
    merge_factors(False)
    merge_vals(4)
    A(f"s_mov_b64 exec, {sr(X_32 + 8, 2)}")
    A(f"v_mov_b32 v{PO}, v{MM}")
    A(f"v_mov_b32 v{PO+1}, v{LL}")
    A(f"s_mov_b64 exec, {sr(X_33 + 8, 2)}")
    sanitize([PO, PO + 1, PO + 2, PO + 3], VNAN)
    A(f"global_store_dwordx4 v{VSL}, {vr(PO, 4)}, {sr(P_WS, 2)} sc1")
    stamp(8)
    gather("p", [(PO + 4, VS3)], ppl[0], ppl[1], 64)
    A(f"ds_write_b128 v{RO+1}, {vr(PO + 4, 4)} offset:{L_P2}")
    A(f"s_mov_b64 exec, {sr(X_ALL + 8, 2)}")
    A("s_waitcnt lgkmcnt(0)")
    stamp(9)
    A("s_cbranch_execz L_nobar")
    A("s_barrier")
    A.label("L_nobar")
    for p in range(4):
        A(f"ds_read_b64 {vr(PO + 8 + 2 * p, 2)}, v{VM} offset:{L_P2 + p * 640 + 512}")
    for p in range(4):
        A(f"ds_read_b64 {vr(PO + 2 * p, 2)}, v{VP} offset:{L_P2 + p * 640}")
    A("s_waitcnt lgkmcnt(4)")
    for p in range(4):
        A(f"v_mov_b32 v{ML+p}, v{PO+8+2*p}")
        A(f"v_mov_b32 v{ML+4+p}, v{PO+9+2*p}")
    A("s_cbranch_execnz L_project")
    A.label("L_tail")
    pick(YS + 2)
    sanitize([YS, YS + 1, YS + 2, YS + 3], VNAN)
    A(f"global_store_dwordx4 v{VY}, {vr(YS, 4)}, {sr(P_WS, 2)} sc1")
    stamp(5)
    A(f"s_cmp_lg_u32 s{HW}, 0")
    A("s_cbranch_scc1 L_fin")
    gather("y", [(PO + 4 * i, RA + i) for i in range(4)], psl[0], psl[1], psl[2])
    stamp(6)
    for i in (0, 2):
        A(f"v_pk_add_f32 {vr(PO + i, 2)}, {vr(PO + i, 2)}, {vr(PO + 4 + i, 2)}")
        A(f"v_pk_add_f32 {vr(PO + 8 + i, 2)}, {vr(PO + 8 + i, 2)}, {vr(PO + 12 + i, 2)}")
    for i in (0, 2):
        A(f"v_pk_add_f32 {vr(PO + i, 2)}, {vr(PO + i, 2)}, {vr(PO + 8 + i, 2)}")
    A("s_nop 0")
    A(f"v_add_f32_dpp v{H_T}, v{PO}, v{PO} row_ror:8 row_mask:0xf bank_mask:0x3")
    A(f"v_add_f32_dpp v{H_T+1}, v{PO+1}, v{PO+1} row_ror:8 row_mask:0xf bank_mask:0x3")
    A(f"v_add_f32_dpp v{H_T}, v{PO+2}, v{PO+2} row_ror:8 row_mask:0xf bank_mask:0xc")
    A(f"v_add_f32_dpp v{H_T+1}, v{PO+3}, v{PO+3} row_ror:8 row_mask:0xf bank_mask:0xc")
    A("s_nop 1")
    A(f"v_permlane16_swap_b32 v{H_T}, v{H_T+1}")
    A(f"v_add_f32 v{H_T}, v{H_T}, v{H_T+1}")
    A(f"v_mov_b32 v{H_T+1}, v{H_T}")
    A("s_nop 1")
    A(f"v_permlane32_swap_b32 v{H_T}, v{H_T+1}")
    A(f"v_add_f32 v{H_T}, v{H_T}, v{H_T+1}")
    A(f"v_cvt_pk_bf16_f32 v{H_T}, v{H_T}, v{H_T}")
    A("s_mov_b32 exec_hi, 0")
    if dry2: A("s_cbranch_execz L_dryret2")
    A(f"global_store_short v{RO}, v{H_T}, {sr(P_OUT, 2)} {outf}")
    if ts:
        A("s_waitcnt vmcnt(0)")
        stamp(7)
    A.label("L_fin")
    flush_stamps(True)
    A.label("L_end")
    A("s_endpgm")
    A.L += ['.section .rodata,"a"', ".p2align 6", f".amdhsa_kernel {NAME}",
            "  .amdhsa_next_free_vgpr 256", f"  .amdhsa_next_free_sgpr {96 if ts else 80}", "  .amdhsa_accum_offset 256",
            "  .amdhsa_group_segment_fixed_size 0", "  .amdhsa_kernarg_size 104", "  .amdhsa_user_sgpr_count 2",
            "  .amdhsa_user_sgpr_kernarg_segment_ptr 1", "  .amdhsa_system_sgpr_workgroup_id_x 1",
            "  .amdhsa_float_denorm_mode_32 3", ".end_amdhsa_kernel"]
    return A.text()

if __name__ == "__main__":
    out = sys.argv[1] if len(sys.argv) > 1 else "concat_heads__mha_block_cached__gqa_block_cached__decode.s"
    kw = {}
    for a in sys.argv[2:]:
        k, v = a.split("=", 1)
        try: v = int(v)
        except ValueError:
            if v.startswith("("): v = eval(v)
        kw[k] = v
    open(out, "w").write(gen(**kw))
```

```python
import sys, math, struct
NAME = "concat_heads__mha_block_cached__gqa_block_cached__decode_kernel"

HEADER = """\
"""

def f32bits(x):
    return struct.unpack("<I", struct.pack("<f", x))[0]

class Asm:
    def __init__(self):
        self.L = []
    def __call__(self, s):
        self.L.append("  " + s.rstrip())
    def label(self, s):
        self.L.append(s + ":")
    def c(self, s):
        self.L.append("  ; " + s)
    def text(self):
        return "\n".join(self.L) + "\n"

def vr(b, n=1):
    return f"v{b}" if n == 1 else f"v[{b}:{b+n-1}]"
def sr(b, n=1):
    return f"s{b}" if n == 1 else f"s[{b}:{b+n-1}]"

L_QA = 0
L_QB = 2048
L_PA = 3072
L_MLA = 5120
L_MLB = 5184
L_CNT = 5376
L_Q2 = 5632
L_PB = 8192
L_P2 = 16384
L_OS = 19456
L_WO = 20480
LDS_BYTES = 20480 + 131072
W_PB = 0
W_Y = 1 << 20
W_QB = 2 << 20
W_CT = 3 << 20
W_TS = 4 << 20

def gen(D=3, PT=4, PRE=1, kvflags="nt", wflags="", qbPD=1, ts=0, sleep=48, dry=0, now=0, nox=0, dyn=1,
        spinmax=1 << 16, psl=(8, 1, 16), ppl=(16, 1, 8), hprio=3, zsleep=1, wot=0, qbsleep=0, xr=0, dbgts=0, remap=2, fine=2, dry2=0, rot=0, xm=0, wotb=12, tlb=0, outf="", fB=None, fAK=None, fAV=None, barit=4, mimic=1, xat=0, rot58=0, cts=16384, guided=0, WL=4, pipe=0, pdly=3):
    RB, PP = 4, 2
    assert D <= RB - 1 and PT % 4 == 0 and (PT + D) * 4 <= 60
    A = Asm()
    A.L.append(HEADER.rstrip("\n"))
    A.L.append(f"; @launch grid=(256,1,1) block=(512,1,1) lds={LDS_BYTES}")
    A.L += ['.amdgcn_target "amdgcn-amd-amdhsa--gfx950"', ".text", f".globl {NAME}", ".p2align 8",
            f".type {NAME},@function", f"{NAME}:"]
    P_AX, P_AK, P_AV, P_AWQ, P_AWO, P_BX, P_BK, P_BV, P_BWQ, P_BWO, P_OUT, P_DBG, P_WS = [4 + 2 * i for i in range(13)]
    A("s_cmp_ge_u32 s2, 256")
    A("s_cbranch_scc1 L_end")
    if xr: A(f"s_xor_b32 s2, s2, {xr}")
    S_S, S_HQ, S_B, S_H = 30, 31, 60, 61
    def do_remap():
        A.c("siblings (wg & ~3 after the remap) sit on XCDs {0,3,5,6} or {1,2,4,7} under round-robin placement (speed only)")
        A("s_lshr_b32 s3, s2, 1")
        A("s_xor_b32 s3, s3, s2")
        A("s_and_b32 s3, s3, 1")
        A("s_lshl_b32 s3, s3, 2")
        A("s_xor_b32 s2, s2, s3")
    A("s_load_dwordx16 s[4:19], s[0:1], 0")
    A("s_load_dwordx8 s[20:27], s[0:1], 64")
    A("s_load_dwordx2 s[28:29], s[0:1], 96")
    A("v_lshrrev_b32 v1, 6, v0")
    A("v_and_b32 v2, 63, v0")
    if remap == 1: do_remap()
    A(f"s_and_b32 s{S_H}, s2, 7")
    A(f"s_lshl_b32 s{S_H}, s{S_H}, 2")
    A(f"s_bfe_u32 s{S_S}, s2, 0x20003")
    A(f"s_add_u32 s{S_H}, s{S_H}, s{S_S}")
    if remap == 2: do_remap()
    A("v_readfirstlane_b32 s3, v1")
    A(f"s_and_b32 s{S_S}, s2, 3")
    A(f"s_and_b32 s{S_HQ}, s2, 31")
    A(f"s_lshr_b32 s{S_B}, s2, 5")
    if ts:
        for i in range(16): A(f"s_mov_b32 s{80 + i}, 0")
    A("s_cmp_ge_u32 s3, 4")
    A("s_cbranch_scc1 L_helper")

    inhelper = [False]
    def stamp(slot):
        if not ts: return
        if dbgts and (not inhelper[0] or slot not in (0, 2, 4, 7, 10)): return
        A("s_memrealtime s[58:59]")
        A("s_waitcnt lgkmcnt(0)")
        A(f"s_mov_b32 s{80 + slot}, s58")
    def flush_stamps(helper=False):
        if not ts: return
        if dbgts:
            if not helper: return
            A("s_cmp_lg_u32 s3, 4")
            A("s_cbranch_scc1 L_end")
            A("s_cmp_ge_u32 s2, 4")
            A("s_cbranch_scc1 L_end")
            A("s_mov_b64 exec, 1")
            for i, sl in enumerate((0, 2, 4, 7)):
                A(f"s_sub_u32 s72, s{80 + sl}, s90")
                A(f"v_mov_b32 v{8 + i}, s72")
            A("s_lshl_b32 s72, s2, 4")
            A("v_mov_b32 v12, s72")
            A(f"global_store_dwordx4 v12, v[8:11], s[{P_DBG}:{P_DBG+1}]")
            return
        A("s_mov_b64 exec, -1")
        A("v_mov_b32 v9, 0")
        for i in range(16): A(f"v_writelane_b32 v9, s{80 + i}, {i}")
        A("s_lshl_b32 s72, s2, 3")
        A("s_add_u32 s72, s72, s3")
        A("s_lshl_b32 s72, s72, 6")
        A(f"s_add_u32 s72, s72, {W_TS}")
        A("v_lshlrev_b32 v8, 2, v2")
        A("v_add_u32 v8, s72, v8")
        A("s_mov_b64 exec, 0xffff")
        A(f"global_store_dword v8, v9, s[{P_WS}:{P_WS+1}]")

    def build_masks(MA, vj, vt):
        A(f"v_and_b32 v{vt}, 1, v{vj}")
        A(f"v_cmp_eq_u32 vcc, 1, v{vt}")
        A(f"v_mov_b32 v{vt}, 0xffff")
        A(f"v_mov_b32 v{vt+1}, 0xffff0000")
        A(f"v_cndmask_b32 v{vt}, v{vt}, v{vt+1}, vcc")
        A(f"v_bfe_u32 v{vt+1}, v{vj}, 1, 3")
        for k in range(8):
            A(f"v_cmp_eq_u32 vcc, {k}, v{vt+1}")
            A("s_nop 1")
            A(f"v_cndmask_b32 v{MA+k}, 0, v{vt}, vcc")

    def bank_reduce(src, dst, Ta, Tb):
        A(f"v_add_f32_dpp v{Ta}, v{src[0]}, v{src[0]} row_ror:8 row_mask:0xf bank_mask:0x3")
        A(f"v_add_f32_dpp v{Tb}, v{src[1]}, v{src[1]} row_ror:8 row_mask:0xf bank_mask:0x3")
        A(f"v_add_f32_dpp v{Ta}, v{src[2]}, v{src[2]} row_ror:8 row_mask:0xf bank_mask:0xc")
        A(f"v_add_f32_dpp v{Tb}, v{src[3]}, v{src[3]} row_ror:8 row_mask:0xf bank_mask:0xc")
        A("s_nop 0")
        A(f"v_add_f32_dpp v{dst}, v{Ta}, v{Ta} row_shl:4 row_mask:0xf bank_mask:0x5")
        A(f"v_add_f32_dpp v{dst}, v{Tb}, v{Tb} row_shr:4 row_mask:0xf bank_mask:0xa")

    V_OFF, V_LANE, VADDR = 1, 2, 3
    QA, MA = 4, 8
    M_A, L_A, T1, T2, MN, VML, AL, PPv, VPA, VPB, VMB = 16, 17, 18, 19, 20, 21, 22, 24, 28, 29, 30
    DA, SS, TT, UU, BOP = 32, 40, 44, 52, 56
    RING = 64
    TMP = 128
    QB, DB, MB, M_B, L_B, SB = 128, 144, 152, 154, 155, 156
    assert TMP + PT * 16 <= 256
    SK, SV = 32, 36
    S_OFF, S_CNT, S_T, S_C, S_OFFB, S_CL, S_CA = 40, 41, 42, 43, 44, 45, 46

    def breg(t):
        return TMP + t * 16 if t < PT else RING + ((t - PT) % RB) * 16
    def issue(base, isV, pair):
        s = SV if isV else SK
        if pair == 0:
            so = f"s{S_OFF}"
        else:
            A(f"s_add_u32 s{S_T}, s{S_OFF}, {pair * 16384}")
            so = f"s{S_T}"
        for j in range(4):
            A(f"buffer_load_dwordx4 {vr(base + 4 * j, 4)}, v{V_OFF}, {sr(s, 4)}, {so} offen offset:{j * 1024} {(kvflags if fAV is None else fAV) if isV else (kvflags if fAK is None else fAK)}")

    A.c("---------------- streamer ----------------")
    A(f"v_lshlrev_b32 v{V_OFF}, 4, v0")
    A(f"s_mul_i32 s{S_T}, s3, 3072")
    A(f"v_add_u32 v{V_OFF}, s{S_T}, v{V_OFF}")
    A(f"s_lshl_b32 s{S_OFF}, s{S_B}, 5")
    A(f"s_add_u32 s{S_OFF}, s{S_OFF}, s{S_H}")
    A(f"s_lshl_b32 s{S_OFF}, s{S_OFF}, 20")
    if rot58:
        A(f"s_mov_b32 s54, s{S_OFF}")
        A(f"s_lshl_b32 s{S_T}, s{S_B}, 17")
        A(f"s_add_u32 s{S_OFF}, s{S_OFF}, s{S_T}")
    A(f"s_mov_b32 s{SK+2}, {256 << 20}")
    A(f"s_mov_b32 s{SK+3}, 0x00020000")
    A(f"s_mov_b32 s{SV+2}, {256 << 20}")
    A(f"s_mov_b32 s{SV+3}, 0x00020000")
    A("s_waitcnt lgkmcnt(0)")
    A(f"s_mov_b64 {sr(SK, 2)}, {sr(P_AK, 2)}")
    A(f"s_mov_b64 {sr(SV, 2)}, {sr(P_AV, 2)}")
    stamp(6)
    for t in range(PT + D):
        if t == PRE: A("s_barrier")
        issue(breg(t), t & 1, t // 2)
    stamp(4)
    A(f"s_add_u32 s{S_OFF}, s{S_OFF}, {PT // 2 * 16384}")
    A(f"s_lshr_b32 s{S_OFFB}, s2, 2")
    A(f"s_lshl_b32 s{S_OFFB}, s{S_OFFB}, 20")
    A(f"s_lshr_b32 s{S_T}, s2, 2")
    A(f"s_mul_i32 s{S_T}, s{S_T}, {cts}")
    A(f"s_add_u32 s{S_T}, s{S_T}, {W_CT}")
    A(f"s_add_u32 s{S_CA}, s{P_WS}, s{S_T}")
    A(f"s_addc_u32 s{S_CA+1}, s{P_WS+1}, 0")
    S_C2, S_HI = 52, 53
    if mimic:
        A(f"s_mov_b32 s{S_C}, {f32bits(math.log2(math.e)):#x}")
        A(f"s_mov_b32 s{S_C2}, {f32bits(128.0 ** -0.5):#x}")
        A(f"s_mov_b32 s{S_HI}, 0xffff0000")
    else:
        A(f"s_mov_b32 s{S_C}, {f32bits(math.log2(math.e) / math.sqrt(128.0)):#x}")
    def round_scores(regs):
        if not mimic: return
        for r in regs: A(f"v_cvt_pk_bf16_f32 v{r}, v{r}, v{r}")
        for r in regs: A(f"v_and_b32 v{r}, s{S_HI}, v{r}")
        for r in regs: A(f"v_mul_f32 v{r}, s{S_C2}, v{r}")
        for r in regs: A(f"v_cvt_pk_bf16_f32 v{r}, v{r}, v{r}")
        for r in regs: A(f"v_and_b32 v{r}, s{S_HI}, v{r}")
    build_masks(MA, V_LANE, T1)
    A(f"v_mov_b32 v{M_A}, 0xff800000")
    A(f"v_mov_b32 v{L_A}, 0")
    A(f"v_and_b32 v{VADDR}, 15, v{V_LANE}")
    A(f"v_lshlrev_b32 v{VADDR}, 5, v{VADDR}")
    A(f"v_bfe_u32 v{SS}, v{V_LANE}, 2, 2")
    A(f"v_lshrrev_b32 v{SS+1}, 4, v{V_LANE}")
    A(f"v_and_b32 v{SS+2}, 3, v{V_LANE}")
    A(f"v_lshlrev_b32 v{SS+1}, 7, v{SS+1}")
    A(f"v_lshl_add_u32 v{SS+1}, v{SS+2}, 2, v{SS+1}")
    A(f"v_lshl_add_u32 v{VPA}, v{SS}, 5, v{SS+1}")
    A(f"v_lshl_add_u32 v{VPB}, v{SS}, 9, v{SS+1}")
    A(f"s_lshl_b32 s{S_T}, s3, 9")
    A(f"v_add_u32 v{VPA}, s{S_T}, v{VPA}")
    A(f"s_lshl_b32 s{S_T}, s3, 11")
    A(f"v_add_u32 v{VPB}, s{S_T}, v{VPB}")
    A(f"s_lshl_b32 s{S_T}, s3, 2")
    A(f"v_mov_b32 v{VML}, s{S_T}")
    A(f"v_lshl_add_u32 v{VMB}, v{SS}, 5, v{VML}")
    A("s_barrier")
    Q0 = 32
    for w in range(4):
        A(f"ds_read_b128 {vr(Q0 + 8 * w, 4)}, v{VADDR} offset:{L_QA + w * 512}")
        A(f"ds_read_b128 {vr(Q0 + 8 * w + 4, 4)}, v{VADDR} offset:{L_QA + w * 512 + 16}")
    A("s_waitcnt lgkmcnt(0)")
    for i in range(0, 8, 2):
        A(f"v_pk_add_f32 {vr(Q0 + i, 2)}, {vr(Q0 + i, 2)}, {vr(Q0 + 8 + i, 2)}")
        A(f"v_pk_add_f32 {vr(Q0 + 16 + i, 2)}, {vr(Q0 + 16 + i, 2)}, {vr(Q0 + 24 + i, 2)}")
    for i in range(0, 8, 2):
        A(f"v_pk_add_f32 {vr(Q0 + i, 2)}, {vr(Q0 + i, 2)}, {vr(Q0 + 16 + i, 2)}")
    for i in range(4):
        A(f"v_cvt_pk_bf16_f32 v{QA+i}, v{Q0+2*i}, v{Q0+2*i+1}")
    for r in range(DA, DA + 8):
        A(f"v_mov_b32 v{r}, 0")
    stamp(0)
    if ts: A("s_getreg_b32 s85, hwreg(HW_REG_XCC_ID)")

    def softmax_tail(S, M, Lr, Dd):
        A("s_nop 1")
        A(f"v_permlane16_swap_b32 v{T1}, v{T2}")
        A(f"v_max_f32 v{T1}, v{T1}, v{T2}")
        A(f"v_mov_b32 v{T2}, v{T1}")
        A("s_nop 1")
        A(f"v_permlane32_swap_b32 v{T1}, v{T2}")
        A(f"v_max3_f32 v{MN}, v{T1}, v{T2}, v{M}")
        A(f"v_sub_f32 v{AL}, v{M}, v{MN}")
        for i, s in enumerate(S):
            A(f"v_sub_f32 v{PPv+i}, v{s}, v{MN}")
        A(f"v_exp_f32 v{AL}, v{AL}")
        for i in range(len(S)):
            A(f"v_exp_f32 v{PPv+i}, v{PPv+i}")
        A(f"v_mov_b32 v{M}, v{MN}")
        A(f"v_fma_f32 v{Lr}, v{Lr}, v{AL}, v{PPv}")
        for i in range(4):
            A(f"v_pk_mul_f32 {vr(Dd + 2 * i, 2)}, {vr(Dd + 2 * i, 2)}, {vr(AL, 2)} op_sel_hi:[1,0]")
        for i in range(1, len(S)):
            A(f"v_add_f32 v{Lr}, v{Lr}, v{PPv+i}")
    def qk_A(kb):
        for i in range(4):
            for u in range(4):
                if i == 0: A(f"v_dot2_f32_bf16 v{SS+u}, v{kb+4*u}, v{QA}, 0")
                else: A(f"v_dot2c_f32_bf16 v{SS+u}, v{kb+4*u+i}, v{QA+i}")
        bank_reduce([SS, SS + 1, SS + 2, SS + 3], UU, TT, TT + 1)
        A("s_nop 1")
        A(f"v_add_f32_dpp v{UU}, v{UU}, v{UU} quad_perm:[1,0,3,2] row_mask:0xf bank_mask:0xf")
        A("s_nop 1")
        A(f"v_add_f32_dpp v{UU}, v{UU}, v{UU} quad_perm:[2,3,0,1] row_mask:0xf bank_mask:0xf")
        round_scores([UU])
        A(f"v_mul_f32 v{SS}, s{S_C}, v{UU}")
        A(f"v_mul_f32 v{T1}, s{S_C}, v{UU}")
        A(f"v_mul_f32 v{T2}, s{S_C}, v{UU}")
        softmax_tail([SS], M_A, L_A, DA)
        A(f"v_cvt_pk_bf16_f32 v{T1}, v{PPv}, v{PPv}")
        for k in range(8):
            A(f"v_and_b32 v{BOP+k}, v{T1}, v{MA+k}")
    def pv(vb, Dd):
        for u in range(4):
            A(f"v_mfma_f32_16x16x16_bf16 {vr(Dd, 4)}, {vr(vb + 4 * u, 2)}, {vr(BOP + 2 * u, 2)}, {vr(Dd, 4)}")
            A(f"v_mfma_f32_16x16x16_bf16 {vr(Dd + 4, 4)}, {vr(vb + 4 * u + 2, 2)}, {vr(BOP + 2 * u, 2)}, {vr(Dd + 4, 4)}")
    def qk_B(kb):
        for u in range(4):
            for i in range(4):
                for h in range(4):
                    if i == 0: A(f"v_dot2_f32_bf16 v{SB+4*u+h}, v{kb+4*u}, v{QB+4*h}, 0")
                    else: A(f"v_dot2c_f32_bf16 v{SB+4*u+h}, v{kb+4*u+i}, v{QB+4*h+i}")
        for u in range(4):
            s = SB + 4 * u
            A(f"v_add_f32_dpp v{TT+2*u}, v{s}, v{s} row_ror:8 row_mask:0xf bank_mask:0x3")
            A(f"v_add_f32_dpp v{TT+2*u+1}, v{s+1}, v{s+1} row_ror:8 row_mask:0xf bank_mask:0x3")
            A(f"v_add_f32_dpp v{TT+2*u}, v{s+2}, v{s+2} row_ror:8 row_mask:0xf bank_mask:0xc")
            A(f"v_add_f32_dpp v{TT+2*u+1}, v{s+3}, v{s+3} row_ror:8 row_mask:0xf bank_mask:0xc")
        for u in range(4):
            A(f"v_add_f32_dpp v{UU+u}, v{TT+2*u}, v{TT+2*u} row_shl:4 row_mask:0xf bank_mask:0x5")
        for u in range(4):
            A(f"v_add_f32_dpp v{UU+u}, v{TT+2*u+1}, v{TT+2*u+1} row_shr:4 row_mask:0xf bank_mask:0xa")
        for u in range(4):
            A(f"v_add_f32_dpp v{UU+u}, v{UU+u}, v{UU+u} quad_perm:[1,0,3,2] row_mask:0xf bank_mask:0xf")
        for u in range(4):
            A(f"v_add_f32_dpp v{UU+u}, v{UU+u}, v{UU+u} quad_perm:[2,3,0,1] row_mask:0xf bank_mask:0xf")
        round_scores([UU, UU + 1, UU + 2, UU + 3])
        for u in range(4):
            A(f"v_mul_f32 v{SS+u}, s{S_C}, v{UU+u}")
        A(f"v_max3_f32 v{T1}, v{SS}, v{SS+1}, v{SS+2}")
        A(f"v_max_f32 v{T1}, v{T1}, v{SS+3}")
        A(f"v_mov_b32 v{T2}, v{T1}")
        softmax_tail([SS, SS + 1, SS + 2, SS + 3], M_B, L_B, DB)
        for u in range(4):
            A(f"v_cvt_pk_bf16_f32 v{SS+u}, v{PPv+u}, v{PPv+u}")
        for u in range(4):
            A(f"v_and_b32 v{BOP+2*u}, v{SS+u}, v{MB}")
            A(f"v_and_b32 v{BOP+2*u+1}, v{SS+u}, v{MB+1}")

    for t in range(PT):
        A(f"s_waitcnt vmcnt({(PT + D - 1 - t) * 4})")
        if t & 1:
            A("s_nop 0")
            pv(breg(t), DA)
        else:
            qk_A(breg(t))
    A(f"s_mov_b32 s{S_CNT}, {(64 - PT // 2) // PP - 1}")

    S_O, S_CH = 48, 50
    S_NX, S_RM = 56, 57
    if guided: A(f"s_mov_b32 s{S_RM}, 0")
    A(f"s_mov_b64 {sr(S_O, 2)}, 0")
    def issue_at(base, isV, sreg):
        s = SV if isV else SK
        for j in range(4):
            A(f"buffer_load_dwordx4 {vr(base + 4 * j, 4)}, v{V_OFF}, {sr(s, 4)}, s{sreg} offen offset:{j * 1024} {kvflags if fB is None else fB}")
    def claim():
        A(f"s_mov_b32 s{S_CL}, 1")
        A(f"s_atomic_add s{S_CL}, {sr(S_CA, 2)}, 0x0 glc")
    def dyn_step(t, tag, qk, Dd):
        A(f"s_waitcnt vmcnt({(D - 1) * 4})")
        ti = (t + D) % RB
        p = ti // 2
        if t & 1:
            if guided:
                A(f"s_cmp_lg_u32 s{S_RM}, 0")
                A(f"s_cbranch_scc1 L_have{tag}{t}")
                A("s_waitcnt lgkmcnt(0)")
                A(f"s_add_u32 s{S_T}, s{S_CL}, 1")
                A(f"s_add_u32 s{S_NX}, s{S_T}, 128")
                A(f"s_mov_b32 s{S_RM}, 1")
                A(f"s_cmp_ge_u32 s{S_T}, 64")
                A(f"s_cbranch_scc1 L_have{tag}{t}")
                A(f"s_and_b32 s{S_NX}, s{S_T}, 15")
                A(f"s_andn2_b32 s{S_RM}, s{S_T}, 15")
                A(f"s_cmp_ge_u32 s{S_T}, 32")
                A(f"s_cselect_b32 s{S_T}, 1, 2")
                A(f"s_lshl_b32 s{S_RM}, s{S_RM}, s{S_T}")
                A(f"s_add_u32 s{S_NX}, s{S_NX}, s{S_RM}")
                A(f"s_lshl_b32 s{S_RM}, 1, s{S_T}")
                A(f"s_cmp_eq_u32 s{S_T}, 1")
                A(f"s_cselect_b32 s{S_T}, 64, 0")
                A(f"s_add_u32 s{S_NX}, s{S_NX}, s{S_T}")
                A.label(f"L_have{tag}{t}")
                A(f"s_mov_b32 s{S_CH+p}, s{S_NX}")
                A(f"s_cmp_lt_u32 s{S_CH+p}, 256")
                A(f"s_cbranch_scc1 L_more{tag}{t}")
                A(f"s_mov_b32 s{SK+2}, 0")
                A(f"s_mov_b32 s{SV+2}, 0")
                A(f"s_branch L_ns{tag}{t}")
                A.label(f"L_more{tag}{t}")
                A(f"s_lshl_b32 s{S_O+p}, s{S_CH+p}, 12")
                A(f"s_add_u32 s{S_O+p}, s{S_O+p}, s{S_OFFB}")
                A(f"s_add_u32 s{S_NX}, s{S_NX}, 16")
                A(f"s_sub_u32 s{S_RM}, s{S_RM}, 1")
                A(f"s_cmp_lg_u32 s{S_RM}, 0")
                A(f"s_cbranch_scc1 L_ns{tag}{t}")
                claim()
                if ts: A("s_add_u32 s87, s87, 1")
            else:
                A("s_waitcnt lgkmcnt(0)")
                A(f"s_add_u32 s{S_CH+p}, s{S_CL}, 1")
                A(f"s_cmp_lt_u32 s{S_CH+p}, 256")
                A(f"s_cbranch_scc1 L_more{tag}{t}")
                A(f"s_mov_b32 s{SK+2}, 0")
                A(f"s_mov_b32 s{SV+2}, 0")
                A(f"s_branch L_ns{tag}{t}")
                A.label(f"L_more{tag}{t}")
                A(f"s_lshl_b32 s{S_O+p}, s{S_CH+p}, 12")
                A(f"s_add_u32 s{S_O+p}, s{S_O+p}, s{S_OFFB}")
                claim()
                if ts: A("s_add_u32 s87, s87, 1")
            A.label(f"L_ns{tag}{t}")
        if WL < 8:
            if t & 1:
                A("s_nop 0")
                pv(RING + t * 16, Dd)
            else: qk(RING + t * 16)
            A(f"s_waitcnt vmcnt({WL})")
        if tag == "A" and t == 0:
            issue(RING + ti * 16, 1, 1)
            A(f"s_mov_b64 {sr(SK, 2)}, {sr(P_BK, 2)}")
            A(f"s_mov_b64 {sr(SV, 2)}, {sr(P_BV, 2)}")
            A(f"s_mov_b32 s{SK+2}, {64 << 20}")
            A(f"s_mov_b32 s{SV+2}, {64 << 20}")
            A(f"v_lshlrev_b32 v{V_OFF}, 4, v{V_LANE}")
        else:
            issue_at(RING + ti * 16, ti & 1, S_O + p)
        if WL < 8: pass
        elif t & 1: pv(RING + t * 16, Dd)
        else: qk(RING + t * 16)
    assert D == 3
    A.label("L_loopA")
    for t in range(RB):
        A(f"s_waitcnt vmcnt({(D - 1) * 4})")
        ti = t + D
        if ti == RB:
            A(f"s_add_u32 s{S_OFF}, s{S_OFF}, {PP * 16384}")
            if rot58:
                A(f"s_and_b32 s{S_OFF}, s{S_OFF}, 0xfffff")
                A(f"s_or_b32 s{S_OFF}, s{S_OFF}, s54")
            for _ in range(xat):
                A("s_mov_b32 s55, 1")
                A(f"s_atomic_add s55, {sr(S_CA, 2)}, 64")
            A(f"s_cmp_lg_u32 s{S_CNT}, {barit}")
            A("s_cbranch_scc1 L_nb")
            A("s_barrier")
            A.label("L_nb")
            A(f"s_cmp_lg_u32 s{S_CNT}, 1")
            A("s_cbranch_scc1 L_nsA")
            claim()
            A.label("L_nsA")
        if WL < 8:
            if t & 1:
                A("s_nop 0")
                pv(RING + t * 16, DA)
            else: qk_A(RING + t * 16)
            A(f"s_waitcnt vmcnt({WL})")
            issue(RING + (ti % RB) * 16, ti & 1, (ti % RB) // 2)
        else:
            issue(RING + (ti % RB) * 16, ti & 1, (ti % RB) // 2)
            if t & 1: pv(RING + t * 16, DA)
            else: qk_A(RING + t * 16)
    A(f"s_sub_u32 s{S_CNT}, s{S_CNT}, 1")
    A(f"s_cmp_lg_u32 s{S_CNT}, 0")
    A("s_cbranch_scc1 L_loopA")
    for t in range(RB): dyn_step(t, "A", qk_A, DA)
    A.c("---- end of A: merge the 4 banks, partial to LDS")
    stamp(2)
    A(f"v_max_f32_dpp v{T1}, v{M_A}, v{M_A} row_ror:4 row_mask:0xf bank_mask:0xf")
    A(f"v_or_b32 v{MB}, v{MA}, v{MA+2}")
    A(f"v_or_b32 v{MB+1}, v{MA+1}, v{MA+3}")
    A(f"v_max_f32_dpp v{T1}, v{T1}, v{T1} row_ror:8 row_mask:0xf bank_mask:0xf")
    A(f"v_sub_f32 v{AL}, v{M_A}, v{T1}")
    A(f"v_exp_f32 v{AL}, v{AL}")
    A(f"ds_write_b32 v{VML}, v{T1} offset:{L_MLA}")
    A(f"v_mul_f32 v{L_A}, v{L_A}, v{AL}")
    for i in range(4):
        A(f"v_pk_mul_f32 {vr(DA + 2 * i, 2)}, {vr(DA + 2 * i, 2)}, {vr(AL, 2)} op_sel_hi:[1,0]")
    A(f"v_add_f32_dpp v{L_A}, v{L_A}, v{L_A} row_ror:4 row_mask:0xf bank_mask:0xf")
    bank_reduce([DA, DA + 1, DA + 2, DA + 3], UU, TT, TT + 1)
    A(f"v_add_f32_dpp v{L_A}, v{L_A}, v{L_A} row_ror:8 row_mask:0xf bank_mask:0xf")
    A(f"ds_write_b32 v{VPA}, v{UU} offset:{L_PA}")
    A(f"v_mov_b32 v{T2}, v{L_A}")
    bank_reduce([DA + 4, DA + 5, DA + 6, DA + 7], UU + 1, TT + 2, TT + 3)
    A(f"v_permlane16_swap_b32 v{L_A}, v{T2}")
    A(f"ds_write_b32 v{VPA}, v{UU+1} offset:{L_PA + 16}")
    A(f"v_add_f32 v{L_A}, v{L_A}, v{T2}")
    A(f"v_mov_b32 v{T2}, v{L_A}")
    A(f"v_or3_b32 v{MB}, v{MB}, v{MA+4}, v{MA+6}")
    A(f"v_or3_b32 v{MB+1}, v{MB+1}, v{MA+5}, v{MA+7}")
    A(f"v_permlane32_swap_b32 v{L_A}, v{T2}")
    A(f"v_add_f32 v{L_A}, v{L_A}, v{T2}")
    A(f"ds_write_b32 v{VML}, v{L_A} offset:{L_MLA + 16}")
    A(f"v_lshrrev_b32 v{T1}, 1, v{VADDR}")
    A(f"v_mov_b32 v{M_B}, 0xff7fffff")
    for r in [L_B] + list(range(DB, DB + 8)):
        A(f"v_mov_b32 v{r}, 0")
    A("s_waitcnt lgkmcnt(0)")
    A("s_barrier")
    for h in range(4):
        A(f"ds_read_b128 {vr(QB + 4 * h, 4)}, v{T1} offset:{L_QB + h * 256}")
    A("s_waitcnt lgkmcnt(0)")
    stamp(3)
    A(f"s_cmp_lt_u32 s{S_CH}, 256")
    A("s_cbranch_scc0 L_finB")
    A.label("L_loopB")
    for t in range(RB):
        dyn_step(t, "B", qk_B, DB)
        if t & 1:
            A(f"s_cmp_lt_u32 s{S_CH + (1 if t == 1 else 0)}, 256")
            A("s_cbranch_scc0 L_finB" if t == 1 else "s_cbranch_scc1 L_loopB")
    A.label("L_finB")
    A.c("---- end of B: partials to LDS")
    A(f"v_mov_b32 v{T1}, v{L_B}")
    A(f"v_mov_b32 v{T2}, v{L_B}")
    A(f"ds_write_b32 v{VMB}, v{M_B} offset:{L_MLB}")
    A("s_nop 0")
    A(f"v_permlane16_swap_b32 v{T1}, v{T2}")
    A(f"v_add_f32 v{T1}, v{T1}, v{T2}")
    A(f"v_mov_b32 v{T2}, v{T1}")
    for r in range(4):
        A(f"ds_write_b32 v{VPB}, v{DB+r} offset:{L_PB + r * 32}")
        A(f"ds_write_b32 v{VPB}, v{DB+4+r} offset:{L_PB + r * 32 + 16}")
    A(f"v_permlane32_swap_b32 v{T1}, v{T2}")
    A(f"v_add_f32 v{T1}, v{T1}, v{T2}")
    A(f"ds_write_b32 v{VMB}, v{T1} offset:{L_MLB + 16}")
    A("s_waitcnt lgkmcnt(0)")
    if dry: A("s_cbranch_execz L_dryret")
    stamp(8)
    A("s_barrier")
    flush_stamps()
    A("s_endpgm")

    A.label("L_helper")
    inhelper[0] = True
    A.c("---------------- helper ----------------")
    HW = 62
    H_OQ, H_LANE, H_OO, H_OX, H_E, H_L16 = 1, 2, 3, 4, 6, 7
    H_MA, H_XQ, H_XB, H_D, H_B, H_T = 8, 108, 20, 28, 36, 44
    ML, F = H_T + 8, H_T + 16
    MM, LL = H_T + 20, H_T + 21
    PO = H_T + 24
    VP, VS1, VM, VY, VNAN, VS2, VS3, VSL = 100, 101, 102, 103, 104, 105, 16, 17
    RA, RO = 120, 124
    VD, VT, VOW, VOR, DD, AO = 126, 20, 3, 5, 68, 28
    YS, SQ = 112, 116
    W0 = 128
    R_X, R_W = 32, 36
    S_SEL0, S_SEL1, S_BASE, S_T2, S_I, S_PH2, S_XO, S_SL = 40, 41, 53, 43, 44, 45, 46, 49
    S_BA, S_PV = 54, 64
    if hprio: A(f"s_setprio {hprio}")
    if dbgts: stamp(10)
    A(f"s_sub_u32 s{HW}, s3, 4")
    A(f"v_lshlrev_b32 v{H_L16}, 4, v{H_LANE}")
    A(f"s_lshl_b32 s{S_SL}, s2, 2")
    A(f"s_add_u32 s{S_SL}, s{S_SL}, s{HW}")
    A(f"s_lshl_b32 s{S_SL}, s{S_SL}, 10")
    A(f"v_add_u32 v{VSL}, s{S_SL}, v{H_L16}")
    A(f"v_add_u32 v{VY}, {W_Y}, v{VSL}")
    A(f"s_lshr_b32 s{S_I}, s{S_SL}, 4")
    A(f"s_add_u32 s{S_I}, s{S_I}, {W_QB - 960}")
    A(f"v_add_u32 v{H_T+9}, s{S_I}, v{H_L16}")
    A(f"v_cmp_gt_u32 vcc, 60, v{H_LANE}")
    for i in range(4): A(f"v_mov_b32 v{SQ+i}, -1")
    A(f"v_cndmask_b32 v{H_T+9}, v{H_T+9}, v{VSL}, vcc")
    A(f"s_lshr_b32 s{S_I}, s2, 2")
    A(f"s_mul_i32 s{S_I}, s{S_I}, {cts}")
    A(f"s_add_u32 s{S_I}, s{S_I}, {W_CT}")
    A(f"v_writelane_b32 v{H_T+9}, s{S_I}, 40")
    A(f"s_or_b32 s{S_I}, s{S_S}, s{HW}")
    A(f"s_cmp_eq_u32 s{S_I}, 0")
    A(f"s_cselect_b32 s{S_T2}, 0x100, 0")
    A(f"s_or_b32 s{S_T2}, s{S_T2}, 0xf000000f")
    A(f"v_lshrrev_b32 v{H_OX}, 2, v{H_LANE}")
    A(f"v_lshlrev_b32 v{H_OX}, 4, v{H_OX}")
    A(f"v_and_b32 v{H_T}, 15, v{H_LANE}")
    A(f"v_lshlrev_b32 v{H_T}, 4, v{H_T}")
    A(f"v_lshrrev_b32 v{H_T+1}, 4, v{H_LANE}")
    A(f"v_lshl_add_u32 v{H_OQ}, v{H_T+1}, 18, v{H_T}")
    A(f"s_mov_b32 s{R_X+2}, 8192")
    A(f"s_mov_b32 s{R_X+3}, 0x00020000")
    A(f"s_mov_b32 s{R_W+2}, {0 if now else 4 << 20}")
    A(f"s_mov_b32 s{R_W+3}, 0x00020000")
    A(f"s_lshl_b32 s{S_XO}, s{S_B}, 10")
    A(f"s_lshl_b32 s{S_I}, s{HW}, 8")
    A(f"s_add_u32 s{S_XO}, s{S_XO}, s{S_I}")
    A(f"s_lshl_b32 s{S_BASE}, s{HW}, 20")
    A(f"s_lshl_b32 s{S_I}, s{S_H}, 8")
    A(f"s_add_u32 s{S_BASE}, s{S_BASE}, s{S_I}")
    A("s_waitcnt lgkmcnt(0)")
    A(f"s_mov_b64 {sr(R_X, 2)}, {sr(P_AX, 2)}")
    A(f"s_mov_b64 {sr(R_W, 2)}, {sr(P_AWQ, 2)}")

    def wload_grp(grp, stride, voff, flags):
        for u in range(4):
            off = (8 * u + grp) * stride
            rg = W0 + (grp * 4 + u) * 4
            imm = off & 4095 if stride == 1024 else 0
            so = off - imm
            if so:
                A(f"s_add_u32 s{S_I}, s{S_BASE}, {so}")
            A(f"buffer_load_dwordx4 {vr(rg, 4)}, v{voff}, {sr(R_W, 4)}, s{S_I if so else S_BASE} offen offset:{imm} {flags}")
    def gemv_grp(grp):
        for k in range(8):
            A(f"v_and_b32 v{H_B+k}, v{H_XB+grp}, v{H_MA+k}")
        for u in range(4):
            rg = W0 + (grp * 4 + u) * 4
            A(f"v_mfma_f32_16x16x16_bf16 {vr(H_D, 4)}, {vr(rg, 2)}, {vr(H_B + 2 * u, 2)}, {vr(H_D, 4)}")
            A(f"v_mfma_f32_16x16x16_bf16 {vr(H_D + 4, 4)}, {vr(rg + 2, 2)}, {vr(H_B + 2 * u, 2)}, {vr(H_D + 4, 4)}")
    def xb_from_xq():
        for grp in range(8):
            A(f"v_perm_b32 v{H_XB+grp}, v{H_XQ+grp//2}, v{H_XQ+grp//2}, s{S_SEL1 if grp & 1 else S_SEL0}")
    def zero_D():
        for i in range(8): A(f"v_mov_b32 v{H_D+i}, 0")
    def reduce_D(ulo, uhi):
        A("s_nop 7")
        bank_reduce([H_D, H_D + 1, H_D + 2, H_D + 3], ulo, H_T + 2, H_T + 3)
        bank_reduce([H_D + 4, H_D + 5, H_D + 6, H_D + 7], uhi, H_T + 4, H_T + 5)
    def sanitize(regs, nanreg):
        for i, r in enumerate(regs):
            A(f"v_cmp_eq_u32 {sr(S_PV + 2 * i, 2)}, -1, v{r}")
        for i, r in enumerate(regs):
            A(f"v_cndmask_b32 v{r}, v{r}, v{nanreg}, {sr(S_PV + 2 * i, 2)}")
    def gather(tag, loads, slp_many, slp_few, thr):
        A(f"s_mov_b64 s[56:57], exec")
        A(f"s_mov_b32 s{S_I}, {spinmax}")
        A.label(f"L_g{tag}")
        for dst, va in loads:
            A(f"global_load_dwordx4 {vr(dst, 4)}, v{va}, {sr(P_WS, 2)} sc1")
        A(f"s_sub_u32 s{S_I}, s{S_I}, 1")
        A(f"s_cbranch_scc1 L_gx{tag}")
        for n, (dst, va) in enumerate(loads):
            A(f"s_waitcnt vmcnt({len(loads) - 1 - n})")
            if n == 0:
                A(f"v_max3_u32 v{H_T}, v{dst}, v{dst+1}, v{dst+2}")
                A(f"v_max_u32 v{H_T}, v{H_T}, v{dst+3}")
            else:
                A(f"v_max3_u32 v{H_T}, v{H_T}, v{dst}, v{dst+1}")
                A(f"v_max3_u32 v{H_T}, v{H_T}, v{dst+2}, v{dst+3}")
        A(f"v_cmp_eq_u32 vcc, -1, v{H_T}")
        A("s_nop 0")
        A(f"s_cbranch_vccz L_gx{tag}")
        A("s_mov_b64 exec, vcc")
        if slp_many != slp_few:
            A(f"s_bcnt1_i32_b64 s{S_T2}, vcc")
            A(f"s_cmp_gt_u32 s{S_T2}, {thr}")
            A(f"s_cbranch_scc1 L_gl{tag}")
            A(f"s_sleep {slp_few}")
            A(f"s_branch L_g{tag}")
            A.label(f"L_gl{tag}")
        A(f"s_sleep {slp_many}")
        A(f"s_branch L_g{tag}")
        A.label(f"L_gx{tag}")
        A("s_mov_b64 exec, s[56:57]")
        A("s_waitcnt vmcnt(0)")
    def gather2(tag, addrs, fin, bufs):
        n = len(addrs)
        def ld(base):
            for k, va in enumerate(addrs): A(f"global_load_dwordx4 {vr(base + 4 * k, 4)}, v{va}, {sr(P_WS, 2)} sc1")
        def chk(base):
            for k in range(n):
                A(f"s_waitcnt vmcnt({2 * n - 1 - k})")
                d = base + 4 * k
                if k == 0:
                    A(f"v_max3_u32 v{H_T}, v{d}, v{d+1}, v{d+2}")
                    A(f"v_max_u32 v{H_T}, v{H_T}, v{d+3}")
                else:
                    A(f"v_max3_u32 v{H_T}, v{H_T}, v{d}, v{d+1}")
                    A(f"v_max3_u32 v{H_T}, v{H_T}, v{d+2}, v{d+3}")
            A(f"v_cmp_eq_u32 vcc, -1, v{H_T}")
            A("s_nop 0")
        A(f"s_mov_b32 s{S_I}, {spinmax}")
        ld(bufs[0])
        A(f"s_sleep {pdly}")
        ld(bufs[1])
        A.label(f"L_g{tag}")
        chk(bufs[0])
        A(f"s_cbranch_vccz L_ga{tag}")
        ld(bufs[0])
        chk(bufs[1])
        A(f"s_cbranch_vccz L_gb{tag}")
        ld(bufs[1])
        A(f"s_sub_u32 s{S_I}, s{S_I}, 1")
        A(f"s_cbranch_scc0 L_g{tag}")
        A.label(f"L_gb{tag}")
        for i in range(0, 4 * n, 2): A(f"v_pk_mov_b32 {vr(fin + i, 2)}, {vr(bufs[1] + i, 2)}, {vr(bufs[1] + i, 2)} op_sel:[0,1]")
        A(f"s_branch L_gx{tag}")
        A.label(f"L_ga{tag}")
        for i in range(0, 4 * n, 2): A(f"v_pk_mov_b32 {vr(fin + i, 2)}, {vr(bufs[0] + i, 2)}, {vr(bufs[0] + i, 2)} op_sel:[0,1]")
        A.label(f"L_gx{tag}")
    def wo_stage(ptr, s_head):
        A(f"s_mov_b64 {sr(R_W, 2)}, {sr(ptr, 2)}")
        A(f"s_lshl_b32 s{S_BASE}, s{s_head}, 17")
        A(f"s_lshl_b32 s{S_I}, s{HW}, 8")
        A(f"s_add_u32 s{S_BASE}, s{S_BASE}, s{S_I}")
        A(f"s_lshl_b32 s{S_T2}, s{HW}, 15")
        A(f"s_add_u32 s{S_T2}, s{S_T2}, {L_WO}")
        for n in range(32):
            A(f"s_add_u32 m0, s{S_T2}, {n * 1024}")
            A(f"s_add_u32 s{S_I}, s{S_BASE}, {n * 4096}")
            A(f"buffer_load_dwordx4 v{VD + ((n >> 1) & 1)}, {sr(R_W, 4)}, s{S_I} offen {wflags} lds")
            if n % 8 == 7: A(f"s_waitcnt vmcnt({wot})")
    def wo_fetch():
        for ct in range(8):
            for st in range(4):
                for h in range(2):
                    rg = W0 + (ct * 4 + st) * 4 + 2 * h
                    A(f"ds_read_b64_tr_b16 {vr(rg, 2)}, v{VT + ct} offset:{(32 * st + 4 * h) * 256}")
            if ct & 1: A("s_waitcnt lgkmcnt(0)")
    def merge_factors(normalize):
        A(f"v_max3_f32 v{MM}, v{ML}, v{ML+1}, v{ML+2}")
        A(f"v_max_f32 v{MM}, v{MM}, v{ML+3}")
        for i in range(4): A(f"v_sub_f32 v{F+i}, v{ML+i}, v{MM}")
        for i in range(4): A(f"v_exp_f32 v{F+i}, v{F+i}")
        A("s_nop 0")
        A(f"v_mul_f32 v{LL}, v{F}, v{ML+4}")
        for i in range(1, 4): A(f"v_fmac_f32 v{LL}, v{F+i}, v{ML+4+i}")
        if normalize:
            A(f"v_rcp_f32 v{LL}, v{LL}")
            A("s_nop 0")
            for i in range(4): A(f"v_mul_f32 v{F+i}, v{F+i}, v{LL}")
    def merge_vals(n):
        for t in range(n): A(f"v_mul_f32 v{PO+t}, v{F}, v{PO+t}")
        for w in range(1, 4):
            for t in range(n): A(f"v_fmac_f32 v{PO+t}, v{F+w}, v{PO+w*n+t}")

    A.c("mark every hand-off slot of this workgroup as not yet written (the chunk counters start at -1 too)")
    A(f"global_store_dwordx4 v{VY}, {vr(SQ, 4)}, {sr(P_WS, 2)} sc1")
    A(f"s_mov_b32 exec_hi, s{S_T2}")
    A(f"global_store_dwordx4 v{H_T+9}, {vr(SQ, 4)}, {sr(P_WS, 2)} sc1")
    A("s_mov_b64 exec, -1")
    A(f"buffer_load_dwordx4 {vr(H_XQ, 4)}, v{H_OX}, {sr(R_X, 4)}, s{S_XO} offen")
    for grp in range(8): wload_grp(grp, 8192, H_OQ, wflags)
    A("s_barrier")
    build_masks(H_MA, H_LANE, H_T)
    A(f"s_mov_b32 s{S_SEL0}, 0x01000100")
    A(f"s_mov_b32 s{S_SEL1}, 0x03020302")
    zero_D()
    A(f"v_bfe_u32 v{H_T}, v{H_LANE}, 2, 2")
    A(f"v_lshrrev_b32 v{H_T+1}, 4, v{H_LANE}")
    A(f"v_and_b32 v{H_E}, 3, v{H_LANE}")
    A(f"v_lshl_add_u32 v{H_E}, v{H_T}, 3, v{H_E}")
    A(f"v_lshl_add_u32 v{H_E}, v{H_T+1}, 5, v{H_E}")
    A(f"s_lshl_b32 s{S_I}, s{HW}, 9")
    A(f"v_lshlrev_b32 v{H_E}, 2, v{H_E}")
    A(f"v_add_u32 v{H_E}, s{S_I}, v{H_E}")
    A(f"v_mov_b32 v{H_T}, 0")
    A(f"v_mov_b32 v{H_T+1}, {L_CNT}")
    A(f"ds_write_b32 v{H_T+1}, v{H_T}")
    A("s_waitcnt vmcnt(32)")
    xb_from_xq()
    for grp in range(8):
        A(f"s_waitcnt vmcnt({(7 - grp) * 4})")
        gemv_grp(grp)
    reduce_D(H_T, H_T + 1)
    A(f"ds_write_b32 v{H_E}, v{H_T} offset:{L_QA}")
    A(f"ds_write_b32 v{H_E}, v{H_T+1} offset:{L_QA + 16}")
    A("s_waitcnt lgkmcnt(0)")
    A("s_barrier")
    stamp(0)
    A.c("---- q_B of head hq, published to the 4 sibling workgroups")
    for _ in range(qbsleep): A("s_sleep 127")
    A(f"s_mov_b64 {sr(R_X, 2)}, {sr(P_BX, 2)}")
    A(f"s_mov_b64 {sr(R_W, 2)}, {sr(P_BWQ, 2)}")
    A(f"s_lshl_b32 s{S_BASE}, s{HW}, 20")
    A(f"s_lshl_b32 s{S_I}, s{S_HQ}, 8")
    A(f"s_add_u32 s{S_BASE}, s{S_BASE}, s{S_I}")
    zero_D()
    A(f"buffer_load_dwordx4 {vr(H_XQ, 4)}, v{H_OX}, {sr(R_X, 4)}, s{S_XO} offen")
    for grp in range(qbPD): wload_grp(grp, 8192, H_OQ, wflags)
    A(f"s_lshl_b32 s{S_I}, s{S_B}, 5")
    A(f"s_add_u32 s{S_BA}, s{P_DBG}, s{S_I}")
    A(f"s_addc_u32 s{S_BA+1}, s{P_DBG+1}, 0")
    A(f"s_lshl_b32 s{S_I}, s{S_B}, 10")
    A(f"s_add_u32 s{S_I}, s{S_I}, s{S_HQ}")
    A(f"s_lshl_b32 s{S_I}, s{S_I}, 7")
    A(f"s_add_u32 s{S_I}, s{S_I}, {W_Y}")
    A(f"v_lshrrev_b32 v{RA}, 3, v{H_LANE}")
    A(f"v_lshlrev_b32 v{RA}, 12, v{RA}")
    A(f"v_and_b32 v{H_T}, 7, v{H_LANE}")
    A(f"v_lshl_add_u32 v{RA}, v{H_T}, 4, v{RA}")
    A(f"v_add_u32 v{RA}, s{S_I}, v{RA}")
    for i in range(1, 4): A(f"v_add_u32 v{RA+i}, {i * 32768}, v{RA}")
    A(f"v_and_b32 v{RO}, 7, v{H_LANE}")
    A(f"v_bfe_u32 v{H_T}, v{H_LANE}, 4, 1")
    A(f"v_lshl_add_u32 v{RO}, v{H_T}, 4, v{RO}")
    A(f"v_bfe_u32 v{H_T}, v{H_LANE}, 3, 1")
    A(f"v_lshl_add_u32 v{RO}, v{H_T}, 9, v{RO}")
    A(f"s_lshr_b32 s{S_I}, s{S_HQ}, 1")
    A(f"s_lshl_b32 s{S_I}, s{S_I}, 5")
    A(f"s_and_b32 s{S_T2}, s{S_HQ}, 1")
    A(f"s_lshl_b32 s{S_T2}, s{S_T2}, 3")
    A(f"s_add_u32 s{S_I}, s{S_I}, s{S_T2}")
    A(f"s_lshl_b32 s{S_T2}, s{S_B}, 10")
    A(f"s_add_u32 s{S_I}, s{S_I}, s{S_T2}")
    A(f"v_add_lshl_u32 v{RO}, v{RO}, s{S_I}, 1")
    A(f"v_lshlrev_b32 v{VP}, 3, v{H_LANE}")
    A(f"v_mov_b32 v{VM}, 0")
    A(f"v_mov_b32 v{VNAN}, 0x7fc07fc0")
    A(f"s_lshl_b32 s{S_I}, s{HW}, 9")
    A(f"v_add_u32 v{VS1}, s{S_I}, v{H_L16}")
    A(f"s_lshl_b32 s{S_I}, s{HW}, 5")
    A(f"v_mov_b32 v{VS2}, s{S_I}")
    A(f"s_andn2_b32 s{S_I}, s2, 3")
    A(f"s_add_u32 s{S_I}, s{S_I}, s{HW}")
    A(f"s_lshl_b32 s{S_I}, s{S_I}, 2")
    A(f"s_add_u32 s{S_I}, s{S_I}, s{S_S}")
    A(f"s_lshl_b32 s{S_I}, s{S_I}, 10")
    A(f"v_add_u32 v{VS3}, s{S_I}, v{H_L16}")
    A(f"s_mul_i32 s{S_I}, s{HW}, 640")
    A(f"v_add_u32 v{RO+1}, s{S_I}, v{H_L16}")
    A(f"s_waitcnt vmcnt({qbPD * 4})")
    xb_from_xq()
    for grp in range(8):
        A(f"s_waitcnt vmcnt({(min(qbPD, 8 - grp) - 1) * 4})")
        if grp + qbPD < 8: wload_grp(grp + qbPD, 8192, H_OQ, wflags)
        gemv_grp(grp)
    reduce_D(H_T, H_T + 1)
    A(f"ds_write_b32 v{H_E}, v{H_T} offset:{L_Q2}")
    A(f"ds_write_b32 v{H_E}, v{H_T+1} offset:{L_Q2 + 16}")
    A(f"v_mov_b32 v{H_T+2}, {L_CNT}")
    A(f"v_mov_b32 v{H_T+3}, 1")
    A("s_waitcnt lgkmcnt(0)")
    A("s_mov_b64 exec, 1")
    A(f"ds_add_rtn_u32 v{H_T+4}, v{H_T+2}, v{H_T+3}")
    A("s_mov_b64 exec, -1")
    A("s_waitcnt lgkmcnt(0)")
    A(f"v_readfirstlane_b32 s{S_T2}, v{H_T+4}")
    A(f"s_cmp_lg_u32 s{S_T2}, 3")
    A("s_cbranch_scc1 L_noq")
    A.c("the last of the 4 waves sums the partials, publishes q_B and raises the 'slots are marked' flag")
    A(f"v_lshlrev_b32 v{H_T}, 1, v{H_L16}")
    A(f"v_mov_b32 v{H_T+8}, s2")
    A("s_mov_b64 exec, 0xffff")
    for w in range(4):
        A(f"ds_read_b128 {vr(PO + 8 * w, 4)}, v{H_T} offset:{L_Q2 + w * 512}")
        A(f"ds_read_b128 {vr(PO + 8 * w + 4, 4)}, v{H_T} offset:{L_Q2 + w * 512 + 16}")
    A(f"s_lshl_b32 s{S_I}, s2, 8")
    A(f"s_add_u32 s{S_I}, s{S_I}, {W_QB}")
    A(f"v_add_u32 v{H_T+1}, s{S_I}, v{H_L16}")
    A("s_waitcnt lgkmcnt(0)")
    for i in range(0, 8, 2):
        A(f"v_pk_add_f32 {vr(PO + i, 2)}, {vr(PO + i, 2)}, {vr(PO + 8 + i, 2)}")
        A(f"v_pk_add_f32 {vr(PO + 16 + i, 2)}, {vr(PO + 16 + i, 2)}, {vr(PO + 24 + i, 2)}")
    for i in range(0, 8, 2):
        A(f"v_pk_add_f32 {vr(PO + i, 2)}, {vr(PO + i, 2)}, {vr(PO + 16 + i, 2)}")
    for i in range(4):
        A(f"v_cvt_pk_bf16_f32 v{SQ+i}, v{PO+2*i}, v{PO+2*i+1}")
    sanitize([SQ, SQ + 1, SQ + 2, SQ + 3], VNAN)
    A(f"global_store_dwordx4 v{H_T+1}, {vr(SQ, 4)}, {sr(P_WS, 2)} sc1")
    A("s_mov_b64 exec, 1")
    A(f"global_store_byte v{H_T+8}, v{H_T+3}, {sr(P_DBG, 2)} sc1")
    A("s_mov_b64 exec, -1")
    A.label("L_noq")
    stamp(14)
    A(f"v_lshrrev_b32 v{H_T}, 4, v{H_LANE}")
    A(f"v_bfe_u32 v{H_T+1}, v{H_LANE}, 1, 3")
    A(f"v_xor_b32 v{H_T+1}, v{H_T+1}, v{H_T}")
    A(f"v_and_b32 v{H_T+2}, 1, v{H_LANE}")
    A(f"v_lshlrev_b32 v{H_T+2}, 4, v{H_T+2}")
    A(f"v_lshl_add_u32 v{H_T+2}, v{H_T}, 10, v{H_T+2}")
    A(f"v_lshl_add_u32 v{VD}, v{H_T+1}, 5, v{H_T+2}")
    A(f"v_xor_b32 v{VD+1}, 128, v{VD}")
    A(f"v_bfe_u32 v{H_T+1}, v{H_LANE}, 2, 2")
    A(f"v_lshl_add_u32 v{H_T+2}, v{H_T}, 3, v{H_T+1}")
    A(f"v_lshlrev_b32 v{H_T+2}, 8, v{H_T+2}")
    A(f"v_and_b32 v{H_T+3}, 3, v{H_LANE}")
    A(f"v_lshl_add_u32 v{H_T+2}, v{H_T+3}, 3, v{H_T+2}")
    A(f"s_lshl_b32 s{S_I}, s{HW}, 15")
    A(f"s_add_u32 s{S_I}, s{S_I}, {L_WO}")
    A(f"v_add_u32 v{H_T+2}, s{S_I}, v{H_T+2}")
    A(f"v_bfe_u32 v{H_T+3}, v{H_LANE}, 2, 3")
    for ct in range(8):
        A(f"v_xor_b32 v{H_T+4}, {ct}, v{H_T+3}")
        A(f"v_lshl_add_u32 v{VT+ct}, v{H_T+4}, 5, v{H_T+2}")
    A(f"s_lshl_b32 s{S_I}, s{HW}, 8")
    A(f"s_add_u32 s{S_I}, s{S_I}, {L_OS}")
    A(f"v_lshlrev_b32 v{VOW}, 2, v{H_LANE}")
    A(f"v_add_u32 v{VOW}, s{S_I}, v{VOW}")
    A(f"v_lshlrev_b32 v{VOR}, 4, v{H_T}")
    A(f"v_add_u32 v{VOR}, s{S_I}, v{VOR}")
    wo_stage(P_AWO, S_H)
    A("s_waitcnt vmcnt(0)")
    wo_fetch()
    wo_stage(P_BWO, S_HQ)
    stamp(15)
    if tlb:
        A.c("touch the pages used later (address-translation warm-up)")
        A(f"s_lshr_b32 s{S_I}, s2, 2")
        A(f"s_lshl_b32 s{S_I}, s{S_I}, 20")
        A(f"v_mov_b32 v{H_T+8}, s{S_I}")
        A(f"s_lshl_b32 s{S_I}, s{S_HQ}, 17")
        A(f"v_mov_b32 v{H_T+9}, s{S_I}")
        A(f"s_cmp_lg_u32 s{HW}, 2")
        A("s_cbranch_scc1 L_notlb")
        A("s_mov_b64 exec, 1")
        A(f"global_load_dword v{H_T+10}, v{H_T+8}, {sr(P_BK, 2)} nt")
        A(f"global_load_dword v{H_T+11}, v{H_T+8}, {sr(P_BV, 2)} nt")
        A("s_mov_b64 exec, -1")
        A.label("L_notlb")
    A(f"s_cmp_lg_u32 s{HW}, 0")
    A("s_cbranch_scc1 L_qbdone")
    for _ in range(zsleep): A("s_sleep 127")
    A.c("every workgroup of this batch has marked its slots")
    A(f"s_mov_b32 s{S_I}, {spinmax}")
    A("s_branch L_z1")
    A.label("L_z")
    A(f"s_sleep {sleep}")
    A.label("L_z1")
    A(f"s_load_dwordx8 {sr(S_PV, 8)}, {sr(S_BA, 2)}, 0x0 glc")
    A(f"s_sub_u32 s{S_I}, s{S_I}, 1")
    A("s_waitcnt lgkmcnt(0)")
    A("s_cbranch_scc1 L_zx")
    A(f"s_and_b64 {sr(S_PV, 2)}, {sr(S_PV, 2)}, {sr(S_PV + 2, 2)}")
    A(f"s_and_b64 {sr(S_PV + 4, 2)}, {sr(S_PV + 4, 2)}, {sr(S_PV + 6, 2)}")
    A(f"s_and_b64 {sr(S_PV, 2)}, {sr(S_PV, 2)}, {sr(S_PV + 4, 2)}")
    A(f"s_and_b32 s{S_PV}, s{S_PV}, s{S_PV+1}")
    A(f"s_cmp_lg_u32 s{S_PV}, 0x01010101")
    A("s_cbranch_scc1 L_z")
    A.label("L_zx")
    A(f"s_andn2_b32 s{S_I}, s2, 3")
    A(f"s_lshl_b32 s{S_I}, s{S_I}, 8")
    A(f"s_add_u32 s{S_I}, s{S_I}, {W_QB}")
    A(f"v_add_u32 v{H_T+1}, s{S_I}, v{H_L16}")
    gather("q", [(PO, H_T + 1)], sleep, sleep, 0)
    A(f"ds_write_b128 v{H_L16}, {vr(PO, 4)} offset:{L_QB}")
    A.label("L_qbdone")
    A("s_waitcnt lgkmcnt(0)")
    X_ALL, X_33, X_32 = 66, 68, 70
    if dry2:
        A.c("instruction-cache / TLB warm-up: wave 0 walks the final code with no lane active")
        A(f"global_load_ushort v{H_T+8}, v{RO}, {sr(P_OUT, 2)}")
        for x in (X_ALL, X_33, X_32): A(f"s_mov_b64 {sr(x + 8, 2)}, 0")
        A(f"s_cmp_lg_u32 s{HW}, 0")
        A("s_cbranch_scc1 L_dryret2")
        A("s_mov_b64 exec, 0")
        A("s_branch L_stage1")
        A.label("L_dryret2")
    if dry:
        A(f"s_cmp_lg_u32 s{HW}, 1")
        A("s_cbranch_scc1 L_dryret")
        A("s_mov_b64 exec, 0")
        A("s_branch L_finB")
        A.label("L_dryret")
    A("s_mov_b64 exec, -1")
    A(f"s_mov_b64 {sr(X_ALL + 8, 2)}, -1")
    A(f"s_mov_b32 s{X_33 + 8}, -1")
    A(f"s_mov_b32 s{X_33 + 9}, 1")
    A(f"s_mov_b32 s{X_32 + 8}, 0")
    A(f"s_mov_b32 s{X_32 + 9}, 1")
    A(f"s_mov_b32 s{S_PH2}, 0")
    A("s_waitcnt vmcnt(0) lgkmcnt(0)")
    stamp(1)
    A("s_barrier")
    A("s_barrier")
    stamp(2)
    A(f"ds_read_b128 {vr(ML, 4)}, v{VM} offset:{L_MLA}")
    A(f"ds_read_b128 {vr(ML + 4, 4)}, v{VM} offset:{L_MLA + 16}")
    for w in range(4):
        A(f"ds_read_b64 {vr(PO + 2 * w, 2)}, v{VP} offset:{L_PA + w * 512}")
    A("s_waitcnt lgkmcnt(4)")
    A.label("L_project")
    A.c("---- shared by A and B: merge 4 partials, normalise, project")
    merge_factors(True)
    A("s_waitcnt lgkmcnt(0)")
    merge_vals(2)
    A(f"v_cvt_pk_bf16_f32 v{PO}, v{PO}, v{PO+1}")
    A(f"ds_write_b32 v{VOW}, v{PO}")
    A("s_waitcnt lgkmcnt(0)")
    for st in range(4):
        A(f"ds_read_b128 {vr(AO + 4 * st, 4)}, v{VOR} offset:{64 * st}")
    for st in range(4):
        A(f"s_waitcnt lgkmcnt({3 - st})")
        for ct in range(8):
            c = "0" if st == 0 else vr(DD + 4 * ct, 4)
            A(f"v_mfma_f32_16x16x32_bf16 {vr(DD + 4 * ct, 4)}, {vr(AO + 4 * st, 4)}, {vr(W0 + (ct * 4 + st) * 4, 4)}, {c}")
    A("s_nop 2")
    A(f"s_cmp_lg_u32 s{S_PH2}, 0")
    A("s_cbranch_scc1 L_tail")
    def pick(dst):
        for ct in range(8):
            A(f"v_mov_b32_dpp v{dst + (ct & 1)}, v{DD + 4 * ct} quad_perm:[0,1,2,3] row_mask:{1 << (ct >> 1):#x} bank_mask:0xf")
    pick(YS)
    stamp(3)
    wo_fetch()
    A(f"s_mov_b32 s{S_PH2}, 1")
    stamp(13)
    A("s_barrier")
    A.label("L_stage1")
    A.c("---- B stage 1: merge head hw over the 4 streamer waves, publish (o[128], m, l)")
    A(f"ds_read_b128 {vr(ML, 4)}, v{VS2} offset:{L_MLB}")
    A(f"ds_read_b128 {vr(ML + 4, 4)}, v{VS2} offset:{L_MLB + 16}")
    for w in range(4):
        A(f"ds_read_b128 {vr(PO + 4 * w, 4)}, v{VS1} offset:{L_PB + w * 2048}")
    stamp(4)
    A("s_waitcnt lgkmcnt(4)" if not ts else "s_waitcnt lgkmcnt(0)")
    merge_factors(False)
    A("s_waitcnt lgkmcnt(0)")
    merge_vals(4)
    A(f"s_mov_b64 exec, {sr(X_32 + 8, 2)}")
    A(f"v_mov_b32 v{PO}, v{MM}")
    A(f"v_mov_b32 v{PO+1}, v{LL}")
    A(f"s_mov_b64 exec, {sr(X_33 + 8, 2)}")
    sanitize([PO, PO + 1, PO + 2, PO + 3], VNAN)
    A(f"global_store_dwordx4 v{VSL}, {vr(PO, 4)}, {sr(P_WS, 2)} sc1")
    stamp(8)
    if pipe: gather2("p", [VS3], PO + 4, (8, 12))
    else: gather("p", [(PO + 4, VS3)], ppl[0], ppl[1], 64)
    A(f"ds_write_b128 v{RO+1}, {vr(PO + 4, 4)} offset:{L_P2}")
    A(f"s_mov_b64 exec, {sr(X_ALL + 8, 2)}")
    A("s_waitcnt lgkmcnt(0)")
    stamp(9)
    A("s_cbranch_execz L_nobar")
    A("s_barrier")
    A.label("L_nobar")
    for p in range(4):
        A(f"ds_read_b64 {vr(PO + 8 + 2 * p, 2)}, v{VM} offset:{L_P2 + p * 640 + 512}")
    for p in range(4):
        A(f"ds_read_b64 {vr(PO + 2 * p, 2)}, v{VP} offset:{L_P2 + p * 640}")
    A("s_waitcnt lgkmcnt(4)")
    for p in range(4):
        A(f"v_mov_b32 v{ML+p}, v{PO+8+2*p}")
        A(f"v_mov_b32 v{ML+4+p}, v{PO+9+2*p}")
    A("s_cbranch_execnz L_project")
    A.label("L_tail")
    pick(YS + 2)
    sanitize([YS, YS + 1, YS + 2, YS + 3], VNAN)
    A(f"global_store_dwordx4 v{VY}, {vr(YS, 4)}, {sr(P_WS, 2)} sc1")
    stamp(5)
    A(f"s_cmp_lg_u32 s{HW}, 0")
    A("s_cbranch_scc1 L_fin")
    if pipe: gather2("y", [RA + i for i in range(4)], PO, (28, 84))
    else: gather("y", [(PO + 4 * i, RA + i) for i in range(4)], psl[0], psl[1], psl[2])
    stamp(6)
    for i in (0, 2):
        A(f"v_pk_add_f32 {vr(PO + i, 2)}, {vr(PO + i, 2)}, {vr(PO + 4 + i, 2)}")
        A(f"v_pk_add_f32 {vr(PO + 8 + i, 2)}, {vr(PO + 8 + i, 2)}, {vr(PO + 12 + i, 2)}")
    for i in (0, 2):
        A(f"v_pk_add_f32 {vr(PO + i, 2)}, {vr(PO + i, 2)}, {vr(PO + 8 + i, 2)}")
    A("s_nop 0")
    A(f"v_add_f32_dpp v{H_T}, v{PO}, v{PO} row_ror:8 row_mask:0xf bank_mask:0x3")
    A(f"v_add_f32_dpp v{H_T+1}, v{PO+1}, v{PO+1} row_ror:8 row_mask:0xf bank_mask:0x3")
    A(f"v_add_f32_dpp v{H_T}, v{PO+2}, v{PO+2} row_ror:8 row_mask:0xf bank_mask:0xc")
    A(f"v_add_f32_dpp v{H_T+1}, v{PO+3}, v{PO+3} row_ror:8 row_mask:0xf bank_mask:0xc")
    A("s_nop 1")
    A(f"v_permlane16_swap_b32 v{H_T}, v{H_T+1}")
    A(f"v_add_f32 v{H_T}, v{H_T}, v{H_T+1}")
    A(f"v_mov_b32 v{H_T+1}, v{H_T}")
    A("s_nop 1")
    A(f"v_permlane32_swap_b32 v{H_T}, v{H_T+1}")
    A(f"v_add_f32 v{H_T}, v{H_T}, v{H_T+1}")
    A(f"v_cvt_pk_bf16_f32 v{H_T}, v{H_T}, v{H_T}")
    A("s_mov_b32 exec_hi, 0")
    if dry2: A("s_cbranch_execz L_dryret2")
    A(f"global_store_short v{RO}, v{H_T}, {sr(P_OUT, 2)} {outf}")
    if ts:
        A("s_waitcnt vmcnt(0)")
        stamp(7)
    A.label("L_fin")
    flush_stamps(True)
    A.label("L_end")
    A("s_endpgm")
    A.L += ['.section .rodata,"a"', ".p2align 6", f".amdhsa_kernel {NAME}",
            "  .amdhsa_next_free_vgpr 256", f"  .amdhsa_next_free_sgpr {96 if ts else 80}", "  .amdhsa_accum_offset 256",
            "  .amdhsa_group_segment_fixed_size 0", "  .amdhsa_kernarg_size 104", "  .amdhsa_user_sgpr_count 2",
            "  .amdhsa_user_sgpr_kernarg_segment_ptr 1", "  .amdhsa_system_sgpr_workgroup_id_x 1",
            "  .amdhsa_float_denorm_mode_32 3", ".end_amdhsa_kernel"]
    return A.text()

if __name__ == "__main__":
    out = sys.argv[1] if len(sys.argv) > 1 else "concat_heads__mha_block_cached__gqa_block_cached__decode.s"
    kw = {}
    for a in sys.argv[2:]:
        k, v = a.split("=", 1)
        try: v = int(v)
        except ValueError:
            if v.startswith("("): v = eval(v)
        kw[k] = v
    open(out, "w").write(gen(**kw))
```

```python
import sys, math, struct
NAME = "concat_heads__mha_block_cached__gqa_block_cached__decode_kernel"

HEADER = """\
"""

def f32bits(x):
    return struct.unpack("<I", struct.pack("<f", x))[0]

class Asm:
    def __init__(self):
        self.L = []
    def __call__(self, s):
        self.L.append("  " + s.rstrip())
    def label(self, s):
        self.L.append(s + ":")
    def c(self, s):
        self.L.append("  ; " + s)
    def text(self):
        return "\n".join(self.L) + "\n"

def vr(b, n=1):
    return f"v{b}" if n == 1 else f"v[{b}:{b+n-1}]"
def sr(b, n=1):
    return f"s{b}" if n == 1 else f"s[{b}:{b+n-1}]"

L_QA = 0
L_QB = 2048
L_PA = 3072
L_MLA = 5120
L_MLB = 5184
L_CNT = 5376
L_Q2 = 5632
L_PB = 8192
L_P2 = 16384
L_OS = 19456
L_WO = 20480
LDS_BYTES = 20480 + 131072
W_PB = 0
W_Y = 1 << 20
W_QB = 2 << 20
W_CT = 3 << 20
W_TS = 4 << 20

def gen(D=3, PT=4, PRE=1, kvflags="nt", wflags="", qbPD=1, ts=0, sleep=48, dry=0, now=0, nox=0, dyn=1,
        spinmax=1 << 16, psl=(8, 1, 16), ppl=(16, 1, 8), hprio=3, zsleep=1, wot=0, qbsleep=0, xr=0, dbgts=0, remap=2, fine=2, dry2=0, rot=0, xm=0, wotb=12, tlb=0, outf="", fB=None, fAK=None, fAV=None, barit=4, mimic=1, xat=0, rot58=0, cts=16384, guided=0, WL=4, pipe=0, pdly=3, lag=0, lagw=0):
    RB, PP = 4, 2
    assert D <= RB - 1 and PT % 4 == 0 and (PT + D) * 4 <= 60
    A = Asm()
    A.L.append(HEADER.rstrip("\n"))
    A.L.append(f"; @launch grid=(256,1,1) block=(512,1,1) lds={LDS_BYTES}")
    A.L += ['.amdgcn_target "amdgcn-amd-amdhsa--gfx950"', ".text", f".globl {NAME}", ".p2align 8",
            f".type {NAME},@function", f"{NAME}:"]
    P_AX, P_AK, P_AV, P_AWQ, P_AWO, P_BX, P_BK, P_BV, P_BWQ, P_BWO, P_OUT, P_DBG, P_WS = [4 + 2 * i for i in range(13)]
    A("s_cmp_ge_u32 s2, 256")
    A("s_cbranch_scc1 L_end")
    if xr: A(f"s_xor_b32 s2, s2, {xr}")
    S_S, S_HQ, S_B, S_H = 30, 31, 60, 61
    def do_remap():
        A.c("siblings (wg & ~3 after the remap) sit on XCDs {0,3,5,6} or {1,2,4,7} under round-robin placement (speed only)")
        A("s_lshr_b32 s3, s2, 1")
        A("s_xor_b32 s3, s3, s2")
        A("s_and_b32 s3, s3, 1")
        A("s_lshl_b32 s3, s3, 2")
        A("s_xor_b32 s2, s2, s3")
    A("s_load_dwordx16 s[4:19], s[0:1], 0")
    A("s_load_dwordx8 s[20:27], s[0:1], 64")
    A("s_load_dwordx2 s[28:29], s[0:1], 96")
    A("v_lshrrev_b32 v1, 6, v0")
    A("v_and_b32 v2, 63, v0")
    if remap == 1: do_remap()
    A(f"s_and_b32 s{S_H}, s2, 7")
    A(f"s_lshl_b32 s{S_H}, s{S_H}, 2")
    A(f"s_bfe_u32 s{S_S}, s2, 0x20003")
    A(f"s_add_u32 s{S_H}, s{S_H}, s{S_S}")
    if remap == 2: do_remap()
    A("v_readfirstlane_b32 s3, v1")
    A(f"s_and_b32 s{S_S}, s2, 3")
    A(f"s_and_b32 s{S_HQ}, s2, 31")
    A(f"s_lshr_b32 s{S_B}, s2, 5")
    if ts:
        for i in range(16): A(f"s_mov_b32 s{80 + i}, 0")
    A("s_cmp_ge_u32 s3, 4")
    A("s_cbranch_scc1 L_helper")

    inhelper = [False]
    def stamp(slot):
        if not ts: return
        if dbgts and (not inhelper[0] or slot not in (0, 2, 4, 7, 10)): return
        A("s_memrealtime s[58:59]")
        A("s_waitcnt lgkmcnt(0)")
        A(f"s_mov_b32 s{80 + slot}, s58")
    def flush_stamps(helper=False):
        if not ts: return
        if dbgts:
            if not helper: return
            A("s_cmp_lg_u32 s3, 4")
            A("s_cbranch_scc1 L_end")
            A("s_and_b32 s72, s2, 15")
            A(f"s_cmp_lg_u32 s72, {dbgts - 1}")
            A("s_cbranch_scc1 L_end")
            A("s_mov_b64 exec, 1")
            A("s_sub_u32 s72, s82, s90")
            A("s_sub_u32 s73, s84, s90")
            A("s_mul_i32 s72, s72, 100000")
            A("s_add_u32 s72, s72, s73")
            A("v_mov_b32 v8, s72")
            A("s_lshr_b32 s72, s2, 4")
            A("s_lshl_b32 s72, s72, 2")
            A("v_mov_b32 v12, s72")
            A(f"global_store_dword v12, v8, s[{P_DBG}:{P_DBG+1}]")
            return
        A("s_mov_b64 exec, -1")
        A("v_mov_b32 v9, 0")
        for i in range(16): A(f"v_writelane_b32 v9, s{80 + i}, {i}")
        A("s_lshl_b32 s72, s2, 3")
        A("s_add_u32 s72, s72, s3")
        A("s_lshl_b32 s72, s72, 6")
        A(f"s_add_u32 s72, s72, {W_TS}")
        A("v_lshlrev_b32 v8, 2, v2")
        A("v_add_u32 v8, s72, v8")
        A("s_mov_b64 exec, 0xffff")
        A(f"global_store_dword v8, v9, s[{P_WS}:{P_WS+1}]")

    def build_masks(MA, vj, vt):
        A(f"v_and_b32 v{vt}, 1, v{vj}")
        A(f"v_cmp_eq_u32 vcc, 1, v{vt}")
        A(f"v_mov_b32 v{vt}, 0xffff")
        A(f"v_mov_b32 v{vt+1}, 0xffff0000")
        A(f"v_cndmask_b32 v{vt}, v{vt}, v{vt+1}, vcc")
        A(f"v_bfe_u32 v{vt+1}, v{vj}, 1, 3")
        for k in range(8):
            A(f"v_cmp_eq_u32 vcc, {k}, v{vt+1}")
            A("s_nop 1")
            A(f"v_cndmask_b32 v{MA+k}, 0, v{vt}, vcc")

    def bank_reduce(src, dst, Ta, Tb):
        A(f"v_add_f32_dpp v{Ta}, v{src[0]}, v{src[0]} row_ror:8 row_mask:0xf bank_mask:0x3")
        A(f"v_add_f32_dpp v{Tb}, v{src[1]}, v{src[1]} row_ror:8 row_mask:0xf bank_mask:0x3")
        A(f"v_add_f32_dpp v{Ta}, v{src[2]}, v{src[2]} row_ror:8 row_mask:0xf bank_mask:0xc")
        A(f"v_add_f32_dpp v{Tb}, v{src[3]}, v{src[3]} row_ror:8 row_mask:0xf bank_mask:0xc")
        A("s_nop 0")
        A(f"v_add_f32_dpp v{dst}, v{Ta}, v{Ta} row_shl:4 row_mask:0xf bank_mask:0x5")
        A(f"v_add_f32_dpp v{dst}, v{Tb}, v{Tb} row_shr:4 row_mask:0xf bank_mask:0xa")

    V_OFF, V_LANE, VADDR = 1, 2, 3
    QA, MA = 4, 8
    M_A, L_A, T1, T2, MN, VML, AL, PPv, VPA, VPB, VMB = 16, 17, 18, 19, 20, 21, 22, 24, 28, 29, 30
    DA, SS, TT, UU, BOP = 32, 40, 44, 52, 56
    RING = 64
    TMP = 128
    QB, DB, MB, M_B, L_B, SB = 128, 144, 152, 154, 155, 156
    assert TMP + PT * 16 <= 256
    SK, SV = 32, 36
    S_OFF, S_CNT, S_T, S_C, S_OFFB, S_CL, S_CA = 40, 41, 42, 43, 44, 45, 46

    def breg(t):
        return TMP + t * 16 if t < PT else RING + ((t - PT) % RB) * 16
    def issue(base, isV, pair):
        s = SV if isV else SK
        if pair == 0:
            so = f"s{S_OFF}"
        else:
            A(f"s_add_u32 s{S_T}, s{S_OFF}, {pair * 16384}")
            so = f"s{S_T}"
        for j in range(4):
            A(f"buffer_load_dwordx4 {vr(base + 4 * j, 4)}, v{V_OFF}, {sr(s, 4)}, {so} offen offset:{j * 1024} {(kvflags if fAV is None else fAV) if isV else (kvflags if fAK is None else fAK)}")

    A.c("---------------- streamer ----------------")
    A(f"v_lshlrev_b32 v{V_OFF}, 4, v0")
    A(f"s_mul_i32 s{S_T}, s3, 3072")
    A(f"v_add_u32 v{V_OFF}, s{S_T}, v{V_OFF}")
    A(f"s_lshl_b32 s{S_OFF}, s{S_B}, 5")
    A(f"s_add_u32 s{S_OFF}, s{S_OFF}, s{S_H}")
    A(f"s_lshl_b32 s{S_OFF}, s{S_OFF}, 20")
    if rot58:
        A(f"s_mov_b32 s54, s{S_OFF}")
        A(f"s_lshl_b32 s{S_T}, s{S_B}, 17")
        A(f"s_add_u32 s{S_OFF}, s{S_OFF}, s{S_T}")
    A(f"s_mov_b32 s{SK+2}, {256 << 20}")
    A(f"s_mov_b32 s{SK+3}, 0x00020000")
    A(f"s_mov_b32 s{SV+2}, {256 << 20}")
    A(f"s_mov_b32 s{SV+3}, 0x00020000")
    A("s_waitcnt lgkmcnt(0)")
    A(f"s_mov_b64 {sr(SK, 2)}, {sr(P_AK, 2)}")
    A(f"s_mov_b64 {sr(SV, 2)}, {sr(P_AV, 2)}")
    stamp(6)
    for t in range(PT + D):
        if t == PRE: A("s_barrier")
        issue(breg(t), t & 1, t // 2)
    stamp(4)
    A(f"s_add_u32 s{S_OFF}, s{S_OFF}, {PT // 2 * 16384}")
    A(f"s_lshr_b32 s{S_OFFB}, s2, 2")
    A(f"s_lshl_b32 s{S_OFFB}, s{S_OFFB}, 20")
    A(f"s_lshr_b32 s{S_T}, s2, 2")
    A(f"s_mul_i32 s{S_T}, s{S_T}, {cts}")
    A(f"s_add_u32 s{S_T}, s{S_T}, {W_CT}")
    A(f"s_add_u32 s{S_CA}, s{P_WS}, s{S_T}")
    A(f"s_addc_u32 s{S_CA+1}, s{P_WS+1}, 0")
    S_C2, S_HI = 52, 53
    if mimic:
        A(f"s_mov_b32 s{S_C}, {f32bits(math.log2(math.e)):#x}")
        A(f"s_mov_b32 s{S_C2}, {f32bits(128.0 ** -0.5):#x}")
        A(f"s_mov_b32 s{S_HI}, 0xffff0000")
    else:
        A(f"s_mov_b32 s{S_C}, {f32bits(math.log2(math.e) / math.sqrt(128.0)):#x}")
    def round_scores(regs):
        if not mimic: return
        for r in regs: A(f"v_cvt_pk_bf16_f32 v{r}, v{r}, v{r}")
        for r in regs: A(f"v_and_b32 v{r}, s{S_HI}, v{r}")
        for r in regs: A(f"v_mul_f32 v{r}, s{S_C2}, v{r}")
        for r in regs: A(f"v_cvt_pk_bf16_f32 v{r}, v{r}, v{r}")
        for r in regs: A(f"v_and_b32 v{r}, s{S_HI}, v{r}")
    build_masks(MA, V_LANE, T1)
    A(f"v_mov_b32 v{M_A}, 0xff800000")
    A(f"v_mov_b32 v{L_A}, 0")
    A(f"v_and_b32 v{VADDR}, 15, v{V_LANE}")
    A(f"v_lshlrev_b32 v{VADDR}, 5, v{VADDR}")
    A(f"v_bfe_u32 v{SS}, v{V_LANE}, 2, 2")
    A(f"v_lshrrev_b32 v{SS+1}, 4, v{V_LANE}")
    A(f"v_and_b32 v{SS+2}, 3, v{V_LANE}")
    A(f"v_lshlrev_b32 v{SS+1}, 7, v{SS+1}")
    A(f"v_lshl_add_u32 v{SS+1}, v{SS+2}, 2, v{SS+1}")
    A(f"v_lshl_add_u32 v{VPA}, v{SS}, 5, v{SS+1}")
    A(f"v_lshl_add_u32 v{VPB}, v{SS}, 9, v{SS+1}")
    A(f"s_lshl_b32 s{S_T}, s3, 9")
    A(f"v_add_u32 v{VPA}, s{S_T}, v{VPA}")
    A(f"s_lshl_b32 s{S_T}, s3, 11")
    A(f"v_add_u32 v{VPB}, s{S_T}, v{VPB}")
    A(f"s_lshl_b32 s{S_T}, s3, 2")
    A(f"v_mov_b32 v{VML}, s{S_T}")
    A(f"v_lshl_add_u32 v{VMB}, v{SS}, 5, v{VML}")
    A("s_barrier")
    if lag:
        A("s_and_b32 s42, s2, 7")
        A("s_cmp_lg_u32 s42, 3")
        A("s_cbranch_scc1 L_nolag")
        if lagw:
            A("s_cmp_lg_u32 s3, 2")
            A("s_cbranch_scc1 L_nolag")
        for _ in range(lag): A("s_sleep 127")
        A.label("L_nolag")
    Q0 = 32
    for w in range(4):
        A(f"ds_read_b128 {vr(Q0 + 8 * w, 4)}, v{VADDR} offset:{L_QA + w * 512}")
        A(f"ds_read_b128 {vr(Q0 + 8 * w + 4, 4)}, v{VADDR} offset:{L_QA + w * 512 + 16}")
    A("s_waitcnt lgkmcnt(0)")
    for i in range(0, 8, 2):
        A(f"v_pk_add_f32 {vr(Q0 + i, 2)}, {vr(Q0 + i, 2)}, {vr(Q0 + 8 + i, 2)}")
        A(f"v_pk_add_f32 {vr(Q0 + 16 + i, 2)}, {vr(Q0 + 16 + i, 2)}, {vr(Q0 + 24 + i, 2)}")
    for i in range(0, 8, 2):
        A(f"v_pk_add_f32 {vr(Q0 + i, 2)}, {vr(Q0 + i, 2)}, {vr(Q0 + 16 + i, 2)}")
    for i in range(4):
        A(f"v_cvt_pk_bf16_f32 v{QA+i}, v{Q0+2*i}, v{Q0+2*i+1}")
    for r in range(DA, DA + 8):
        A(f"v_mov_b32 v{r}, 0")
    stamp(0)
    if ts: A("s_getreg_b32 s85, hwreg(HW_REG_XCC_ID)")

    def softmax_tail(S, M, Lr, Dd):
        A("s_nop 1")
        A(f"v_permlane16_swap_b32 v{T1}, v{T2}")
        A(f"v_max_f32 v{T1}, v{T1}, v{T2}")
        A(f"v_mov_b32 v{T2}, v{T1}")
        A("s_nop 1")
        A(f"v_permlane32_swap_b32 v{T1}, v{T2}")
        A(f"v_max3_f32 v{MN}, v{T1}, v{T2}, v{M}")
        A(f"v_sub_f32 v{AL}, v{M}, v{MN}")
        for i, s in enumerate(S):
            A(f"v_sub_f32 v{PPv+i}, v{s}, v{MN}")
        A(f"v_exp_f32 v{AL}, v{AL}")
        for i in range(len(S)):
            A(f"v_exp_f32 v{PPv+i}, v{PPv+i}")
        A(f"v_mov_b32 v{M}, v{MN}")
        A(f"v_fma_f32 v{Lr}, v{Lr}, v{AL}, v{PPv}")
        for i in range(4):
            A(f"v_pk_mul_f32 {vr(Dd + 2 * i, 2)}, {vr(Dd + 2 * i, 2)}, {vr(AL, 2)} op_sel_hi:[1,0]")
        for i in range(1, len(S)):
            A(f"v_add_f32 v{Lr}, v{Lr}, v{PPv+i}")
    def qk_A(kb):
        for i in range(4):
            for u in range(4):
                if i == 0: A(f"v_dot2_f32_bf16 v{SS+u}, v{kb+4*u}, v{QA}, 0")
                else: A(f"v_dot2c_f32_bf16 v{SS+u}, v{kb+4*u+i}, v{QA+i}")
        bank_reduce([SS, SS + 1, SS + 2, SS + 3], UU, TT, TT + 1)
        A("s_nop 1")
        A(f"v_add_f32_dpp v{UU}, v{UU}, v{UU} quad_perm:[1,0,3,2] row_mask:0xf bank_mask:0xf")
        A("s_nop 1")
        A(f"v_add_f32_dpp v{UU}, v{UU}, v{UU} quad_perm:[2,3,0,1] row_mask:0xf bank_mask:0xf")
        round_scores([UU])
        A(f"v_mul_f32 v{SS}, s{S_C}, v{UU}")
        A(f"v_mul_f32 v{T1}, s{S_C}, v{UU}")
        A(f"v_mul_f32 v{T2}, s{S_C}, v{UU}")
        softmax_tail([SS], M_A, L_A, DA)
        A(f"v_cvt_pk_bf16_f32 v{T1}, v{PPv}, v{PPv}")
        for k in range(8):
            A(f"v_and_b32 v{BOP+k}, v{T1}, v{MA+k}")
    def pv(vb, Dd):
        for u in range(4):
            A(f"v_mfma_f32_16x16x16_bf16 {vr(Dd, 4)}, {vr(vb + 4 * u, 2)}, {vr(BOP + 2 * u, 2)}, {vr(Dd, 4)}")
            A(f"v_mfma_f32_16x16x16_bf16 {vr(Dd + 4, 4)}, {vr(vb + 4 * u + 2, 2)}, {vr(BOP + 2 * u, 2)}, {vr(Dd + 4, 4)}")
    def qk_B(kb):
        for u in range(4):
            for i in range(4):
                for h in range(4):
                    if i == 0: A(f"v_dot2_f32_bf16 v{SB+4*u+h}, v{kb+4*u}, v{QB+4*h}, 0")
                    else: A(f"v_dot2c_f32_bf16 v{SB+4*u+h}, v{kb+4*u+i}, v{QB+4*h+i}")
        for u in range(4):
            s = SB + 4 * u
            A(f"v_add_f32_dpp v{TT+2*u}, v{s}, v{s} row_ror:8 row_mask:0xf bank_mask:0x3")
            A(f"v_add_f32_dpp v{TT+2*u+1}, v{s+1}, v{s+1} row_ror:8 row_mask:0xf bank_mask:0x3")
            A(f"v_add_f32_dpp v{TT+2*u}, v{s+2}, v{s+2} row_ror:8 row_mask:0xf bank_mask:0xc")
            A(f"v_add_f32_dpp v{TT+2*u+1}, v{s+3}, v{s+3} row_ror:8 row_mask:0xf bank_mask:0xc")
        for u in range(4):
            A(f"v_add_f32_dpp v{UU+u}, v{TT+2*u}, v{TT+2*u} row_shl:4 row_mask:0xf bank_mask:0x5")
        for u in range(4):
            A(f"v_add_f32_dpp v{UU+u}, v{TT+2*u+1}, v{TT+2*u+1} row_shr:4 row_mask:0xf bank_mask:0xa")
        for u in range(4):
            A(f"v_add_f32_dpp v{UU+u}, v{UU+u}, v{UU+u} quad_perm:[1,0,3,2] row_mask:0xf bank_mask:0xf")
        for u in range(4):
            A(f"v_add_f32_dpp v{UU+u}, v{UU+u}, v{UU+u} quad_perm:[2,3,0,1] row_mask:0xf bank_mask:0xf")
        round_scores([UU, UU + 1, UU + 2, UU + 3])
        for u in range(4):
            A(f"v_mul_f32 v{SS+u}, s{S_C}, v{UU+u}")
        A(f"v_max3_f32 v{T1}, v{SS}, v{SS+1}, v{SS+2}")
        A(f"v_max_f32 v{T1}, v{T1}, v{SS+3}")
        A(f"v_mov_b32 v{T2}, v{T1}")
        softmax_tail([SS, SS + 1, SS + 2, SS + 3], M_B, L_B, DB)
        for u in range(4):
            A(f"v_cvt_pk_bf16_f32 v{SS+u}, v{PPv+u}, v{PPv+u}")
        for u in range(4):
            A(f"v_and_b32 v{BOP+2*u}, v{SS+u}, v{MB}")
            A(f"v_and_b32 v{BOP+2*u+1}, v{SS+u}, v{MB+1}")

    for t in range(PT):
        A(f"s_waitcnt vmcnt({(PT + D - 1 - t) * 4})")
        if t & 1:
            A("s_nop 0")
            pv(breg(t), DA)
        else:
            qk_A(breg(t))
    A(f"s_mov_b32 s{S_CNT}, {(64 - PT // 2) // PP - 1}")

    S_O, S_CH = 48, 50
    S_NX, S_RM = 56, 57
    if guided: A(f"s_mov_b32 s{S_RM}, 0")
    A(f"s_mov_b64 {sr(S_O, 2)}, 0")
    def issue_at(base, isV, sreg):
        s = SV if isV else SK
        for j in range(4):
            A(f"buffer_load_dwordx4 {vr(base + 4 * j, 4)}, v{V_OFF}, {sr(s, 4)}, s{sreg} offen offset:{j * 1024} {kvflags if fB is None else fB}")
    def claim():
        A(f"s_mov_b32 s{S_CL}, 1")
        A(f"s_atomic_add s{S_CL}, {sr(S_CA, 2)}, 0x0 glc")
    def dyn_step(t, tag, qk, Dd):
        A(f"s_waitcnt vmcnt({(D - 1) * 4})")
        ti = (t + D) % RB
        p = ti // 2
        if t & 1:
            if guided:
                A(f"s_cmp_lg_u32 s{S_RM}, 0")
                A(f"s_cbranch_scc1 L_have{tag}{t}")
                A("s_waitcnt lgkmcnt(0)")
                A(f"s_add_u32 s{S_T}, s{S_CL}, 1")
                A(f"s_add_u32 s{S_NX}, s{S_T}, 128")
                A(f"s_mov_b32 s{S_RM}, 1")
                A(f"s_cmp_ge_u32 s{S_T}, 64")
                A(f"s_cbranch_scc1 L_have{tag}{t}")
                A(f"s_and_b32 s{S_NX}, s{S_T}, 15")
                A(f"s_andn2_b32 s{S_RM}, s{S_T}, 15")
                A(f"s_cmp_ge_u32 s{S_T}, 32")
                A(f"s_cselect_b32 s{S_T}, 1, 2")
                A(f"s_lshl_b32 s{S_RM}, s{S_RM}, s{S_T}")
                A(f"s_add_u32 s{S_NX}, s{S_NX}, s{S_RM}")
                A(f"s_lshl_b32 s{S_RM}, 1, s{S_T}")
                A(f"s_cmp_eq_u32 s{S_T}, 1")
                A(f"s_cselect_b32 s{S_T}, 64, 0")
                A(f"s_add_u32 s{S_NX}, s{S_NX}, s{S_T}")
                A.label(f"L_have{tag}{t}")
                A(f"s_mov_b32 s{S_CH+p}, s{S_NX}")
                A(f"s_cmp_lt_u32 s{S_CH+p}, 256")
                A(f"s_cbranch_scc1 L_more{tag}{t}")
                A(f"s_mov_b32 s{SK+2}, 0")
                A(f"s_mov_b32 s{SV+2}, 0")
                A(f"s_branch L_ns{tag}{t}")
                A.label(f"L_more{tag}{t}")
                A(f"s_lshl_b32 s{S_O+p}, s{S_CH+p}, 12")
                A(f"s_add_u32 s{S_O+p}, s{S_O+p}, s{S_OFFB}")
                A(f"s_add_u32 s{S_NX}, s{S_NX}, 16")
                A(f"s_sub_u32 s{S_RM}, s{S_RM}, 1")
                A(f"s_cmp_lg_u32 s{S_RM}, 0")
                A(f"s_cbranch_scc1 L_ns{tag}{t}")
                claim()
                if ts: A("s_add_u32 s87, s87, 1")
            else:
                A("s_waitcnt lgkmcnt(0)")
                A(f"s_add_u32 s{S_CH+p}, s{S_CL}, 1")
                A(f"s_cmp_lt_u32 s{S_CH+p}, 256")
                A(f"s_cbranch_scc1 L_more{tag}{t}")
                A(f"s_mov_b32 s{SK+2}, 0")
                A(f"s_mov_b32 s{SV+2}, 0")
                A(f"s_branch L_ns{tag}{t}")
                A.label(f"L_more{tag}{t}")
                A(f"s_lshl_b32 s{S_O+p}, s{S_CH+p}, 12")
                A(f"s_add_u32 s{S_O+p}, s{S_O+p}, s{S_OFFB}")
                claim()
                if ts: A("s_add_u32 s87, s87, 1")
            A.label(f"L_ns{tag}{t}")
        if WL < 8:
            if t & 1:
                A("s_nop 0")
                pv(RING + t * 16, Dd)
            else: qk(RING + t * 16)
            A(f"s_waitcnt vmcnt({WL})")
        if tag == "A" and t == 0:
            issue(RING + ti * 16, 1, 1)
            A(f"s_mov_b64 {sr(SK, 2)}, {sr(P_BK, 2)}")
            A(f"s_mov_b64 {sr(SV, 2)}, {sr(P_BV, 2)}")
            A(f"s_mov_b32 s{SK+2}, {64 << 20}")
            A(f"s_mov_b32 s{SV+2}, {64 << 20}")
            A(f"v_lshlrev_b32 v{V_OFF}, 4, v{V_LANE}")
        else:
            issue_at(RING + ti * 16, ti & 1, S_O + p)
        if WL < 8: pass
        elif t & 1: pv(RING + t * 16, Dd)
        else: qk(RING + t * 16)
    assert D == 3
    A.label("L_loopA")
    for t in range(RB):
        A(f"s_waitcnt vmcnt({(D - 1) * 4})")
        ti = t + D
        if ti == RB:
            A(f"s_add_u32 s{S_OFF}, s{S_OFF}, {PP * 16384}")
            if rot58:
                A(f"s_and_b32 s{S_OFF}, s{S_OFF}, 0xfffff")
                A(f"s_or_b32 s{S_OFF}, s{S_OFF}, s54")
            for _ in range(xat):
                A("s_mov_b32 s55, 1")
                A(f"s_atomic_add s55, {sr(S_CA, 2)}, 64")
            A(f"s_cmp_lg_u32 s{S_CNT}, {barit}")
            A("s_cbranch_scc1 L_nb")
            A("s_barrier")
            A.label("L_nb")
            A(f"s_cmp_lg_u32 s{S_CNT}, 1")
            A("s_cbranch_scc1 L_nsA")
            claim()
            A.label("L_nsA")
        if WL < 8:
            if t & 1:
                A("s_nop 0")
                pv(RING + t * 16, DA)
            else: qk_A(RING + t * 16)
            A(f"s_waitcnt vmcnt({WL})")
            issue(RING + (ti % RB) * 16, ti & 1, (ti % RB) // 2)
        else:
            issue(RING + (ti % RB) * 16, ti & 1, (ti % RB) // 2)
            if t & 1: pv(RING + t * 16, DA)
            else: qk_A(RING + t * 16)
    A(f"s_sub_u32 s{S_CNT}, s{S_CNT}, 1")
    A(f"s_cmp_lg_u32 s{S_CNT}, 0")
    A("s_cbranch_scc1 L_loopA")
    for t in range(RB): dyn_step(t, "A", qk_A, DA)
    A.c("---- end of A: merge the 4 banks, partial to LDS")
    stamp(2)
    A(f"v_max_f32_dpp v{T1}, v{M_A}, v{M_A} row_ror:4 row_mask:0xf bank_mask:0xf")
    A(f"v_or_b32 v{MB}, v{MA}, v{MA+2}")
    A(f"v_or_b32 v{MB+1}, v{MA+1}, v{MA+3}")
    A(f"v_max_f32_dpp v{T1}, v{T1}, v{T1} row_ror:8 row_mask:0xf bank_mask:0xf")
    A(f"v_sub_f32 v{AL}, v{M_A}, v{T1}")
    A(f"v_exp_f32 v{AL}, v{AL}")
    A(f"ds_write_b32 v{VML}, v{T1} offset:{L_MLA}")
    A(f"v_mul_f32 v{L_A}, v{L_A}, v{AL}")
    for i in range(4):
        A(f"v_pk_mul_f32 {vr(DA + 2 * i, 2)}, {vr(DA + 2 * i, 2)}, {vr(AL, 2)} op_sel_hi:[1,0]")
    A(f"v_add_f32_dpp v{L_A}, v{L_A}, v{L_A} row_ror:4 row_mask:0xf bank_mask:0xf")
    bank_reduce([DA, DA + 1, DA + 2, DA + 3], UU, TT, TT + 1)
    A(f"v_add_f32_dpp v{L_A}, v{L_A}, v{L_A} row_ror:8 row_mask:0xf bank_mask:0xf")
    A(f"ds_write_b32 v{VPA}, v{UU} offset:{L_PA}")
    A(f"v_mov_b32 v{T2}, v{L_A}")
    bank_reduce([DA + 4, DA + 5, DA + 6, DA + 7], UU + 1, TT + 2, TT + 3)
    A(f"v_permlane16_swap_b32 v{L_A}, v{T2}")
    A(f"ds_write_b32 v{VPA}, v{UU+1} offset:{L_PA + 16}")
    A(f"v_add_f32 v{L_A}, v{L_A}, v{T2}")
    A(f"v_mov_b32 v{T2}, v{L_A}")
    A(f"v_or3_b32 v{MB}, v{MB}, v{MA+4}, v{MA+6}")
    A(f"v_or3_b32 v{MB+1}, v{MB+1}, v{MA+5}, v{MA+7}")
    A(f"v_permlane32_swap_b32 v{L_A}, v{T2}")
    A(f"v_add_f32 v{L_A}, v{L_A}, v{T2}")
    A(f"ds_write_b32 v{VML}, v{L_A} offset:{L_MLA + 16}")
    A(f"v_lshrrev_b32 v{T1}, 1, v{VADDR}")
    A(f"v_mov_b32 v{M_B}, 0xff7fffff")
    for r in [L_B] + list(range(DB, DB + 8)):
        A(f"v_mov_b32 v{r}, 0")
    A("s_waitcnt lgkmcnt(0)")
    A("s_barrier")
    for h in range(4):
        A(f"ds_read_b128 {vr(QB + 4 * h, 4)}, v{T1} offset:{L_QB + h * 256}")
    A("s_waitcnt lgkmcnt(0)")
    stamp(3)
    A(f"s_cmp_lt_u32 s{S_CH}, 256")
    A("s_cbranch_scc0 L_finB")
    A.label("L_loopB")
    for t in range(RB):
        dyn_step(t, "B", qk_B, DB)
        if t & 1:
            A(f"s_cmp_lt_u32 s{S_CH + (1 if t == 1 else 0)}, 256")
            A("s_cbranch_scc0 L_finB" if t == 1 else "s_cbranch_scc1 L_loopB")
    A.label("L_finB")
    A.c("---- end of B: partials to LDS")
    A(f"v_mov_b32 v{T1}, v{L_B}")
    A(f"v_mov_b32 v{T2}, v{L_B}")
    A(f"ds_write_b32 v{VMB}, v{M_B} offset:{L_MLB}")
    A("s_nop 0")
    A(f"v_permlane16_swap_b32 v{T1}, v{T2}")
    A(f"v_add_f32 v{T1}, v{T1}, v{T2}")
    A(f"v_mov_b32 v{T2}, v{T1}")
    for r in range(4):
        A(f"ds_write_b32 v{VPB}, v{DB+r} offset:{L_PB + r * 32}")
        A(f"ds_write_b32 v{VPB}, v{DB+4+r} offset:{L_PB + r * 32 + 16}")
    A(f"v_permlane32_swap_b32 v{T1}, v{T2}")
    A(f"v_add_f32 v{T1}, v{T1}, v{T2}")
    A(f"ds_write_b32 v{VMB}, v{T1} offset:{L_MLB + 16}")
    A("s_waitcnt lgkmcnt(0)")
    if dry: A("s_cbranch_execz L_dryret")
    stamp(8)
    A("s_barrier")
    flush_stamps()
    A("s_endpgm")

    A.label("L_helper")
    inhelper[0] = True
    A.c("---------------- helper ----------------")
    HW = 62
    H_OQ, H_LANE, H_OO, H_OX, H_E, H_L16 = 1, 2, 3, 4, 6, 7
    H_MA, H_XQ, H_XB, H_D, H_B, H_T = 8, 108, 20, 28, 36, 44
    ML, F = H_T + 8, H_T + 16
    MM, LL = H_T + 20, H_T + 21
    PO = H_T + 24
    VP, VS1, VM, VY, VNAN, VS2, VS3, VSL = 100, 101, 102, 103, 104, 105, 16, 17
    RA, RO = 120, 124
    VD, VT, VOW, VOR, DD, AO = 126, 20, 3, 5, 68, 28
    YS, SQ = 112, 116
    W0 = 128
    R_X, R_W = 32, 36
    S_SEL0, S_SEL1, S_BASE, S_T2, S_I, S_PH2, S_XO, S_SL = 40, 41, 53, 43, 44, 45, 46, 49
    S_BA, S_PV = 54, 64
    if hprio: A(f"s_setprio {hprio}")
    if dbgts: stamp(10)
    A(f"s_sub_u32 s{HW}, s3, 4")
    A(f"v_lshlrev_b32 v{H_L16}, 4, v{H_LANE}")
    A(f"s_lshl_b32 s{S_SL}, s2, 2")
    A(f"s_add_u32 s{S_SL}, s{S_SL}, s{HW}")
    A(f"s_lshl_b32 s{S_SL}, s{S_SL}, 10")
    A(f"v_add_u32 v{VSL}, s{S_SL}, v{H_L16}")
    A(f"v_add_u32 v{VY}, {W_Y}, v{VSL}")
    A(f"s_lshr_b32 s{S_I}, s{S_SL}, 4")
    A(f"s_add_u32 s{S_I}, s{S_I}, {W_QB - 960}")
    A(f"v_add_u32 v{H_T+9}, s{S_I}, v{H_L16}")
    A(f"v_cmp_gt_u32 vcc, 60, v{H_LANE}")
    for i in range(4): A(f"v_mov_b32 v{SQ+i}, -1")
    A(f"v_cndmask_b32 v{H_T+9}, v{H_T+9}, v{VSL}, vcc")
    A(f"s_lshr_b32 s{S_I}, s2, 2")
    A(f"s_mul_i32 s{S_I}, s{S_I}, {cts}")
    A(f"s_add_u32 s{S_I}, s{S_I}, {W_CT}")
    A(f"v_writelane_b32 v{H_T+9}, s{S_I}, 40")
    A(f"s_or_b32 s{S_I}, s{S_S}, s{HW}")
    A(f"s_cmp_eq_u32 s{S_I}, 0")
    A(f"s_cselect_b32 s{S_T2}, 0x100, 0")
    A(f"s_or_b32 s{S_T2}, s{S_T2}, 0xf000000f")
    A(f"v_lshrrev_b32 v{H_OX}, 2, v{H_LANE}")
    A(f"v_lshlrev_b32 v{H_OX}, 4, v{H_OX}")
    A(f"v_and_b32 v{H_T}, 15, v{H_LANE}")
    A(f"v_lshlrev_b32 v{H_T}, 4, v{H_T}")
    A(f"v_lshrrev_b32 v{H_T+1}, 4, v{H_LANE}")
    A(f"v_lshl_add_u32 v{H_OQ}, v{H_T+1}, 18, v{H_T}")
    A(f"s_mov_b32 s{R_X+2}, 8192")
    A(f"s_mov_b32 s{R_X+3}, 0x00020000")
    A(f"s_mov_b32 s{R_W+2}, {0 if now else 4 << 20}")
    A(f"s_mov_b32 s{R_W+3}, 0x00020000")
    A(f"s_lshl_b32 s{S_XO}, s{S_B}, 10")
    A(f"s_lshl_b32 s{S_I}, s{HW}, 8")
    A(f"s_add_u32 s{S_XO}, s{S_XO}, s{S_I}")
    A(f"s_lshl_b32 s{S_BASE}, s{HW}, 20")
    A(f"s_lshl_b32 s{S_I}, s{S_H}, 8")
    A(f"s_add_u32 s{S_BASE}, s{S_BASE}, s{S_I}")
    A("s_waitcnt lgkmcnt(0)")
    A(f"s_mov_b64 {sr(R_X, 2)}, {sr(P_AX, 2)}")
    A(f"s_mov_b64 {sr(R_W, 2)}, {sr(P_AWQ, 2)}")

    def wload_grp(grp, stride, voff, flags):
        for u in range(4):
            off = (8 * u + grp) * stride
            rg = W0 + (grp * 4 + u) * 4
            imm = off & 4095 if stride == 1024 else 0
            so = off - imm
            if so:
                A(f"s_add_u32 s{S_I}, s{S_BASE}, {so}")
            A(f"buffer_load_dwordx4 {vr(rg, 4)}, v{voff}, {sr(R_W, 4)}, s{S_I if so else S_BASE} offen offset:{imm} {flags}")
    def gemv_grp(grp):
        for k in range(8):
            A(f"v_and_b32 v{H_B+k}, v{H_XB+grp}, v{H_MA+k}")
        for u in range(4):
            rg = W0 + (grp * 4 + u) * 4
            A(f"v_mfma_f32_16x16x16_bf16 {vr(H_D, 4)}, {vr(rg, 2)}, {vr(H_B + 2 * u, 2)}, {vr(H_D, 4)}")
            A(f"v_mfma_f32_16x16x16_bf16 {vr(H_D + 4, 4)}, {vr(rg + 2, 2)}, {vr(H_B + 2 * u, 2)}, {vr(H_D + 4, 4)}")
    def xb_from_xq():
        for grp in range(8):
            A(f"v_perm_b32 v{H_XB+grp}, v{H_XQ+grp//2}, v{H_XQ+grp//2}, s{S_SEL1 if grp & 1 else S_SEL0}")
    def zero_D():
        for i in range(8): A(f"v_mov_b32 v{H_D+i}, 0")
    def reduce_D(ulo, uhi):
        A("s_nop 7")
        bank_reduce([H_D, H_D + 1, H_D + 2, H_D + 3], ulo, H_T + 2, H_T + 3)
        bank_reduce([H_D + 4, H_D + 5, H_D + 6, H_D + 7], uhi, H_T + 4, H_T + 5)
    def sanitize(regs, nanreg):
        for i, r in enumerate(regs):
            A(f"v_cmp_eq_u32 {sr(S_PV + 2 * i, 2)}, -1, v{r}")
        for i, r in enumerate(regs):
            A(f"v_cndmask_b32 v{r}, v{r}, v{nanreg}, {sr(S_PV + 2 * i, 2)}")
    def gather(tag, loads, slp_many, slp_few, thr):
        A(f"s_mov_b64 s[56:57], exec")
        A(f"s_mov_b32 s{S_I}, {spinmax}")
        A.label(f"L_g{tag}")
        for dst, va in loads:
            A(f"global_load_dwordx4 {vr(dst, 4)}, v{va}, {sr(P_WS, 2)} sc1")
        A(f"s_sub_u32 s{S_I}, s{S_I}, 1")
        A(f"s_cbranch_scc1 L_gx{tag}")
        for n, (dst, va) in enumerate(loads):
            A(f"s_waitcnt vmcnt({len(loads) - 1 - n})")
            if n == 0:
                A(f"v_max3_u32 v{H_T}, v{dst}, v{dst+1}, v{dst+2}")
                A(f"v_max_u32 v{H_T}, v{H_T}, v{dst+3}")
            else:
                A(f"v_max3_u32 v{H_T}, v{H_T}, v{dst}, v{dst+1}")
                A(f"v_max3_u32 v{H_T}, v{H_T}, v{dst+2}, v{dst+3}")
        A(f"v_cmp_eq_u32 vcc, -1, v{H_T}")
        A("s_nop 0")
        A(f"s_cbranch_vccz L_gx{tag}")
        A("s_mov_b64 exec, vcc")
        if slp_many != slp_few:
            A(f"s_bcnt1_i32_b64 s{S_T2}, vcc")
            A(f"s_cmp_gt_u32 s{S_T2}, {thr}")
            A(f"s_cbranch_scc1 L_gl{tag}")
            A(f"s_sleep {slp_few}")
            A(f"s_branch L_g{tag}")
            A.label(f"L_gl{tag}")
        A(f"s_sleep {slp_many}")
        A(f"s_branch L_g{tag}")
        A.label(f"L_gx{tag}")
        A("s_mov_b64 exec, s[56:57]")
        A("s_waitcnt vmcnt(0)")
    def gather2(tag, addrs, fin, bufs):
        n = len(addrs)
        def ld(base):
            for k, va in enumerate(addrs): A(f"global_load_dwordx4 {vr(base + 4 * k, 4)}, v{va}, {sr(P_WS, 2)} sc1")
        def chk(base):
            for k in range(n):
                A(f"s_waitcnt vmcnt({2 * n - 1 - k})")
                d = base + 4 * k
                if k == 0:
                    A(f"v_max3_u32 v{H_T}, v{d}, v{d+1}, v{d+2}")
                    A(f"v_max_u32 v{H_T}, v{H_T}, v{d+3}")
                else:
                    A(f"v_max3_u32 v{H_T}, v{H_T}, v{d}, v{d+1}")
                    A(f"v_max3_u32 v{H_T}, v{H_T}, v{d+2}, v{d+3}")
            A(f"v_cmp_eq_u32 vcc, -1, v{H_T}")
            A("s_nop 0")
        A(f"s_mov_b32 s{S_I}, {spinmax}")
        ld(bufs[0])
        A(f"s_sleep {pdly}")
        ld(bufs[1])
        A.label(f"L_g{tag}")
        chk(bufs[0])
        A(f"s_cbranch_vccz L_ga{tag}")
        ld(bufs[0])
        chk(bufs[1])
        A(f"s_cbranch_vccz L_gb{tag}")
        ld(bufs[1])
        A(f"s_sub_u32 s{S_I}, s{S_I}, 1")
        A(f"s_cbranch_scc0 L_g{tag}")
        A.label(f"L_gb{tag}")
        for i in range(0, 4 * n, 2): A(f"v_pk_mov_b32 {vr(fin + i, 2)}, {vr(bufs[1] + i, 2)}, {vr(bufs[1] + i, 2)} op_sel:[0,1]")
        A(f"s_branch L_gx{tag}")
        A.label(f"L_ga{tag}")
        for i in range(0, 4 * n, 2): A(f"v_pk_mov_b32 {vr(fin + i, 2)}, {vr(bufs[0] + i, 2)}, {vr(bufs[0] + i, 2)} op_sel:[0,1]")
        A.label(f"L_gx{tag}")
    def wo_stage(ptr, s_head):
        A(f"s_mov_b64 {sr(R_W, 2)}, {sr(ptr, 2)}")
        A(f"s_lshl_b32 s{S_BASE}, s{s_head}, 17")
        A(f"s_lshl_b32 s{S_I}, s{HW}, 8")
        A(f"s_add_u32 s{S_BASE}, s{S_BASE}, s{S_I}")
        A(f"s_lshl_b32 s{S_T2}, s{HW}, 15")
        A(f"s_add_u32 s{S_T2}, s{S_T2}, {L_WO}")
        for n in range(32):
            A(f"s_add_u32 m0, s{S_T2}, {n * 1024}")
            A(f"s_add_u32 s{S_I}, s{S_BASE}, {n * 4096}")
            A(f"buffer_load_dwordx4 v{VD + ((n >> 1) & 1)}, {sr(R_W, 4)}, s{S_I} offen {wflags} lds")
            if n % 8 == 7: A(f"s_waitcnt vmcnt({wot})")
    def wo_fetch():
        for ct in range(8):
            for st in range(4):
                for h in range(2):
                    rg = W0 + (ct * 4 + st) * 4 + 2 * h
                    A(f"ds_read_b64_tr_b16 {vr(rg, 2)}, v{VT + ct} offset:{(32 * st + 4 * h) * 256}")
            if ct & 1: A("s_waitcnt lgkmcnt(0)")
    def merge_factors(normalize):
        A(f"v_max3_f32 v{MM}, v{ML}, v{ML+1}, v{ML+2}")
        A(f"v_max_f32 v{MM}, v{MM}, v{ML+3}")
        for i in range(4): A(f"v_sub_f32 v{F+i}, v{ML+i}, v{MM}")
        for i in range(4): A(f"v_exp_f32 v{F+i}, v{F+i}")
        A("s_nop 0")
        A(f"v_mul_f32 v{LL}, v{F}, v{ML+4}")
        for i in range(1, 4): A(f"v_fmac_f32 v{LL}, v{F+i}, v{ML+4+i}")
        if normalize:
            A(f"v_rcp_f32 v{LL}, v{LL}")
            A("s_nop 0")
            for i in range(4): A(f"v_mul_f32 v{F+i}, v{F+i}, v{LL}")
    def merge_vals(n):
        for t in range(n): A(f"v_mul_f32 v{PO+t}, v{F}, v{PO+t}")
        for w in range(1, 4):
            for t in range(n): A(f"v_fmac_f32 v{PO+t}, v{F+w}, v{PO+w*n+t}")

    A.c("mark every hand-off slot of this workgroup as not yet written (the chunk counters start at -1 too)")
    A(f"global_store_dwordx4 v{VY}, {vr(SQ, 4)}, {sr(P_WS, 2)} sc1")
    A(f"s_mov_b32 exec_hi, s{S_T2}")
    A(f"global_store_dwordx4 v{H_T+9}, {vr(SQ, 4)}, {sr(P_WS, 2)} sc1")
    A("s_mov_b64 exec, -1")
    A(f"buffer_load_dwordx4 {vr(H_XQ, 4)}, v{H_OX}, {sr(R_X, 4)}, s{S_XO} offen")
    for grp in range(8): wload_grp(grp, 8192, H_OQ, wflags)
    A("s_barrier")
    build_masks(H_MA, H_LANE, H_T)
    A(f"s_mov_b32 s{S_SEL0}, 0x01000100")
    A(f"s_mov_b32 s{S_SEL1}, 0x03020302")
    zero_D()
    A(f"v_bfe_u32 v{H_T}, v{H_LANE}, 2, 2")
    A(f"v_lshrrev_b32 v{H_T+1}, 4, v{H_LANE}")
    A(f"v_and_b32 v{H_E}, 3, v{H_LANE}")
    A(f"v_lshl_add_u32 v{H_E}, v{H_T}, 3, v{H_E}")
    A(f"v_lshl_add_u32 v{H_E}, v{H_T+1}, 5, v{H_E}")
    A(f"s_lshl_b32 s{S_I}, s{HW}, 9")
    A(f"v_lshlrev_b32 v{H_E}, 2, v{H_E}")
    A(f"v_add_u32 v{H_E}, s{S_I}, v{H_E}")
    A(f"v_mov_b32 v{H_T}, 0")
    A(f"v_mov_b32 v{H_T+1}, {L_CNT}")
    A(f"ds_write_b32 v{H_T+1}, v{H_T}")
    A("s_waitcnt vmcnt(32)")
    xb_from_xq()
    for grp in range(8):
        A(f"s_waitcnt vmcnt({(7 - grp) * 4})")
        gemv_grp(grp)
    reduce_D(H_T, H_T + 1)
    A(f"ds_write_b32 v{H_E}, v{H_T} offset:{L_QA}")
    A(f"ds_write_b32 v{H_E}, v{H_T+1} offset:{L_QA + 16}")
    A("s_waitcnt lgkmcnt(0)")
    A("s_barrier")
    stamp(0)
    A.c("---- q_B of head hq, published to the 4 sibling workgroups")
    for _ in range(qbsleep): A("s_sleep 127")
    A(f"s_mov_b64 {sr(R_X, 2)}, {sr(P_BX, 2)}")
    A(f"s_mov_b64 {sr(R_W, 2)}, {sr(P_BWQ, 2)}")
    A(f"s_lshl_b32 s{S_BASE}, s{HW}, 20")
    A(f"s_lshl_b32 s{S_I}, s{S_HQ}, 8")
    A(f"s_add_u32 s{S_BASE}, s{S_BASE}, s{S_I}")
    zero_D()
    A(f"buffer_load_dwordx4 {vr(H_XQ, 4)}, v{H_OX}, {sr(R_X, 4)}, s{S_XO} offen")
    for grp in range(qbPD): wload_grp(grp, 8192, H_OQ, wflags)
    A(f"s_lshl_b32 s{S_I}, s{S_B}, 5")
    A(f"s_add_u32 s{S_BA}, s{P_DBG}, s{S_I}")
    A(f"s_addc_u32 s{S_BA+1}, s{P_DBG+1}, 0")
    A(f"s_lshl_b32 s{S_I}, s{S_B}, 10")
    A(f"s_add_u32 s{S_I}, s{S_I}, s{S_HQ}")
    A(f"s_lshl_b32 s{S_I}, s{S_I}, 7")
    A(f"s_add_u32 s{S_I}, s{S_I}, {W_Y}")
    A(f"v_lshrrev_b32 v{RA}, 3, v{H_LANE}")
    A(f"v_lshlrev_b32 v{RA}, 12, v{RA}")
    A(f"v_and_b32 v{H_T}, 7, v{H_LANE}")
    A(f"v_lshl_add_u32 v{RA}, v{H_T}, 4, v{RA}")
    A(f"v_add_u32 v{RA}, s{S_I}, v{RA}")
    for i in range(1, 4): A(f"v_add_u32 v{RA+i}, {i * 32768}, v{RA}")
    A(f"v_and_b32 v{RO}, 7, v{H_LANE}")
    A(f"v_bfe_u32 v{H_T}, v{H_LANE}, 4, 1")
    A(f"v_lshl_add_u32 v{RO}, v{H_T}, 4, v{RO}")
    A(f"v_bfe_u32 v{H_T}, v{H_LANE}, 3, 1")
    A(f"v_lshl_add_u32 v{RO}, v{H_T}, 9, v{RO}")
    A(f"s_lshr_b32 s{S_I}, s{S_HQ}, 1")
    A(f"s_lshl_b32 s{S_I}, s{S_I}, 5")
    A(f"s_and_b32 s{S_T2}, s{S_HQ}, 1")
    A(f"s_lshl_b32 s{S_T2}, s{S_T2}, 3")
    A(f"s_add_u32 s{S_I}, s{S_I}, s{S_T2}")
    A(f"s_lshl_b32 s{S_T2}, s{S_B}, 10")
    A(f"s_add_u32 s{S_I}, s{S_I}, s{S_T2}")
    A(f"v_add_lshl_u32 v{RO}, v{RO}, s{S_I}, 1")
    A(f"v_lshlrev_b32 v{VP}, 3, v{H_LANE}")
    A(f"v_mov_b32 v{VM}, 0")
    A(f"v_mov_b32 v{VNAN}, 0x7fc07fc0")
    A(f"s_lshl_b32 s{S_I}, s{HW}, 9")
    A(f"v_add_u32 v{VS1}, s{S_I}, v{H_L16}")
    A(f"s_lshl_b32 s{S_I}, s{HW}, 5")
    A(f"v_mov_b32 v{VS2}, s{S_I}")
    A(f"s_andn2_b32 s{S_I}, s2, 3")
    A(f"s_add_u32 s{S_I}, s{S_I}, s{HW}")
    A(f"s_lshl_b32 s{S_I}, s{S_I}, 2")
    A(f"s_add_u32 s{S_I}, s{S_I}, s{S_S}")
    A(f"s_lshl_b32 s{S_I}, s{S_I}, 10")
    A(f"v_add_u32 v{VS3}, s{S_I}, v{H_L16}")
    A(f"s_mul_i32 s{S_I}, s{HW}, 640")
    A(f"v_add_u32 v{RO+1}, s{S_I}, v{H_L16}")
    A(f"s_waitcnt vmcnt({qbPD * 4})")
    xb_from_xq()
    for grp in range(8):
        A(f"s_waitcnt vmcnt({(min(qbPD, 8 - grp) - 1) * 4})")
        if grp + qbPD < 8: wload_grp(grp + qbPD, 8192, H_OQ, wflags)
        gemv_grp(grp)
    reduce_D(H_T, H_T + 1)
    A(f"ds_write_b32 v{H_E}, v{H_T} offset:{L_Q2}")
    A(f"ds_write_b32 v{H_E}, v{H_T+1} offset:{L_Q2 + 16}")
    A(f"v_mov_b32 v{H_T+2}, {L_CNT}")
    A(f"v_mov_b32 v{H_T+3}, 1")
    A("s_waitcnt lgkmcnt(0)")
    A("s_mov_b64 exec, 1")
    A(f"ds_add_rtn_u32 v{H_T+4}, v{H_T+2}, v{H_T+3}")
    A("s_mov_b64 exec, -1")
    A("s_waitcnt lgkmcnt(0)")
    A(f"v_readfirstlane_b32 s{S_T2}, v{H_T+4}")
    A(f"s_cmp_lg_u32 s{S_T2}, 3")
    A("s_cbranch_scc1 L_noq")
    A.c("the last of the 4 waves sums the partials, publishes q_B and raises the 'slots are marked' flag")
    A(f"v_lshlrev_b32 v{H_T}, 1, v{H_L16}")
    A(f"v_mov_b32 v{H_T+8}, s2")
    A("s_mov_b64 exec, 0xffff")
    for w in range(4):
        A(f"ds_read_b128 {vr(PO + 8 * w, 4)}, v{H_T} offset:{L_Q2 + w * 512}")
        A(f"ds_read_b128 {vr(PO + 8 * w + 4, 4)}, v{H_T} offset:{L_Q2 + w * 512 + 16}")
    A(f"s_lshl_b32 s{S_I}, s2, 8")
    A(f"s_add_u32 s{S_I}, s{S_I}, {W_QB}")
    A(f"v_add_u32 v{H_T+1}, s{S_I}, v{H_L16}")
    A("s_waitcnt lgkmcnt(0)")
    for i in range(0, 8, 2):
        A(f"v_pk_add_f32 {vr(PO + i, 2)}, {vr(PO + i, 2)}, {vr(PO + 8 + i, 2)}")
        A(f"v_pk_add_f32 {vr(PO + 16 + i, 2)}, {vr(PO + 16 + i, 2)}, {vr(PO + 24 + i, 2)}")
    for i in range(0, 8, 2):
        A(f"v_pk_add_f32 {vr(PO + i, 2)}, {vr(PO + i, 2)}, {vr(PO + 16 + i, 2)}")
    for i in range(4):
        A(f"v_cvt_pk_bf16_f32 v{SQ+i}, v{PO+2*i}, v{PO+2*i+1}")
    sanitize([SQ, SQ + 1, SQ + 2, SQ + 3], VNAN)
    A(f"global_store_dwordx4 v{H_T+1}, {vr(SQ, 4)}, {sr(P_WS, 2)} sc1")
    A("s_mov_b64 exec, 1")
    A(f"global_store_byte v{H_T+8}, v{H_T+3}, {sr(P_DBG, 2)} sc1")
    A("s_mov_b64 exec, -1")
    A.label("L_noq")
    stamp(14)
    A(f"v_lshrrev_b32 v{H_T}, 4, v{H_LANE}")
    A(f"v_bfe_u32 v{H_T+1}, v{H_LANE}, 1, 3")
    A(f"v_xor_b32 v{H_T+1}, v{H_T+1}, v{H_T}")
    A(f"v_and_b32 v{H_T+2}, 1, v{H_LANE}")
    A(f"v_lshlrev_b32 v{H_T+2}, 4, v{H_T+2}")
    A(f"v_lshl_add_u32 v{H_T+2}, v{H_T}, 10, v{H_T+2}")
    A(f"v_lshl_add_u32 v{VD}, v{H_T+1}, 5, v{H_T+2}")
    A(f"v_xor_b32 v{VD+1}, 128, v{VD}")
    A(f"v_bfe_u32 v{H_T+1}, v{H_LANE}, 2, 2")
    A(f"v_lshl_add_u32 v{H_T+2}, v{H_T}, 3, v{H_T+1}")
    A(f"v_lshlrev_b32 v{H_T+2}, 8, v{H_T+2}")
    A(f"v_and_b32 v{H_T+3}, 3, v{H_LANE}")
    A(f"v_lshl_add_u32 v{H_T+2}, v{H_T+3}, 3, v{H_T+2}")
    A(f"s_lshl_b32 s{S_I}, s{HW}, 15")
    A(f"s_add_u32 s{S_I}, s{S_I}, {L_WO}")
    A(f"v_add_u32 v{H_T+2}, s{S_I}, v{H_T+2}")
    A(f"v_bfe_u32 v{H_T+3}, v{H_LANE}, 2, 3")
    for ct in range(8):
        A(f"v_xor_b32 v{H_T+4}, {ct}, v{H_T+3}")
        A(f"v_lshl_add_u32 v{VT+ct}, v{H_T+4}, 5, v{H_T+2}")
    A(f"s_lshl_b32 s{S_I}, s{HW}, 8")
    A(f"s_add_u32 s{S_I}, s{S_I}, {L_OS}")
    A(f"v_lshlrev_b32 v{VOW}, 2, v{H_LANE}")
    A(f"v_add_u32 v{VOW}, s{S_I}, v{VOW}")
    A(f"v_lshlrev_b32 v{VOR}, 4, v{H_T}")
    A(f"v_add_u32 v{VOR}, s{S_I}, v{VOR}")
    wo_stage(P_AWO, S_H)
    A("s_waitcnt vmcnt(0)")
    wo_fetch()
    wo_stage(P_BWO, S_HQ)
    stamp(15)
    if tlb:
        A.c("touch the pages used later (address-translation warm-up)")
        A(f"s_lshr_b32 s{S_I}, s2, 2")
        A(f"s_lshl_b32 s{S_I}, s{S_I}, 20")
        A(f"v_mov_b32 v{H_T+8}, s{S_I}")
        A(f"s_lshl_b32 s{S_I}, s{S_HQ}, 17")
        A(f"v_mov_b32 v{H_T+9}, s{S_I}")
        A(f"s_cmp_lg_u32 s{HW}, 2")
        A("s_cbranch_scc1 L_notlb")
        A("s_mov_b64 exec, 1")
        A(f"global_load_dword v{H_T+10}, v{H_T+8}, {sr(P_BK, 2)} nt")
        A(f"global_load_dword v{H_T+11}, v{H_T+8}, {sr(P_BV, 2)} nt")
        A("s_mov_b64 exec, -1")
        A.label("L_notlb")
    A(f"s_cmp_lg_u32 s{HW}, 0")
    A("s_cbranch_scc1 L_qbdone")
    for _ in range(zsleep): A("s_sleep 127")
    A.c("every workgroup of this batch has marked its slots")
    A(f"s_mov_b32 s{S_I}, {spinmax}")
    A("s_branch L_z1")
    A.label("L_z")
    A(f"s_sleep {sleep}")
    A.label("L_z1")
    A(f"s_load_dwordx8 {sr(S_PV, 8)}, {sr(S_BA, 2)}, 0x0 glc")
    A(f"s_sub_u32 s{S_I}, s{S_I}, 1")
    A("s_waitcnt lgkmcnt(0)")
    A("s_cbranch_scc1 L_zx")
    A(f"s_and_b64 {sr(S_PV, 2)}, {sr(S_PV, 2)}, {sr(S_PV + 2, 2)}")
    A(f"s_and_b64 {sr(S_PV + 4, 2)}, {sr(S_PV + 4, 2)}, {sr(S_PV + 6, 2)}")
    A(f"s_and_b64 {sr(S_PV, 2)}, {sr(S_PV, 2)}, {sr(S_PV + 4, 2)}")
    A(f"s_and_b32 s{S_PV}, s{S_PV}, s{S_PV+1}")
    A(f"s_cmp_lg_u32 s{S_PV}, 0x01010101")
    A("s_cbranch_scc1 L_z")
    A.label("L_zx")
    A(f"s_andn2_b32 s{S_I}, s2, 3")
    A(f"s_lshl_b32 s{S_I}, s{S_I}, 8")
    A(f"s_add_u32 s{S_I}, s{S_I}, {W_QB}")
    A(f"v_add_u32 v{H_T+1}, s{S_I}, v{H_L16}")
    gather("q", [(PO, H_T + 1)], sleep, sleep, 0)
    A(f"ds_write_b128 v{H_L16}, {vr(PO, 4)} offset:{L_QB}")
    A.label("L_qbdone")
    A("s_waitcnt lgkmcnt(0)")
    X_ALL, X_33, X_32 = 66, 68, 70
    if dry2:
        A.c("instruction-cache / TLB warm-up: wave 0 walks the final code with no lane active")
        A(f"global_load_ushort v{H_T+8}, v{RO}, {sr(P_OUT, 2)}")
        for x in (X_ALL, X_33, X_32): A(f"s_mov_b64 {sr(x + 8, 2)}, 0")
        A(f"s_cmp_lg_u32 s{HW}, 0")
        A("s_cbranch_scc1 L_dryret2")
        A("s_mov_b64 exec, 0")
        A("s_branch L_stage1")
        A.label("L_dryret2")
    if dry:
        A(f"s_cmp_lg_u32 s{HW}, 1")
        A("s_cbranch_scc1 L_dryret")
        A("s_mov_b64 exec, 0")
        A("s_branch L_finB")
        A.label("L_dryret")
    A("s_mov_b64 exec, -1")
    A(f"s_mov_b64 {sr(X_ALL + 8, 2)}, -1")
    A(f"s_mov_b32 s{X_33 + 8}, -1")
    A(f"s_mov_b32 s{X_33 + 9}, 1")
    A(f"s_mov_b32 s{X_32 + 8}, 0")
    A(f"s_mov_b32 s{X_32 + 9}, 1")
    A(f"s_mov_b32 s{S_PH2}, 0")
    A("s_waitcnt vmcnt(0) lgkmcnt(0)")
    stamp(1)
    A("s_barrier")
    A("s_barrier")
    stamp(2)
    A(f"ds_read_b128 {vr(ML, 4)}, v{VM} offset:{L_MLA}")
    A(f"ds_read_b128 {vr(ML + 4, 4)}, v{VM} offset:{L_MLA + 16}")
    for w in range(4):
        A(f"ds_read_b64 {vr(PO + 2 * w, 2)}, v{VP} offset:{L_PA + w * 512}")
    A("s_waitcnt lgkmcnt(4)")
    A.label("L_project")
    A.c("---- shared by A and B: merge 4 partials, normalise, project")
    merge_factors(True)
    A("s_waitcnt lgkmcnt(0)")
    merge_vals(2)
    A(f"v_cvt_pk_bf16_f32 v{PO}, v{PO}, v{PO+1}")
    A(f"ds_write_b32 v{VOW}, v{PO}")
    A("s_waitcnt lgkmcnt(0)")
    for st in range(4):
        A(f"ds_read_b128 {vr(AO + 4 * st, 4)}, v{VOR} offset:{64 * st}")
    for st in range(4):
        A(f"s_waitcnt lgkmcnt({3 - st})")
        for ct in range(8):
            c = "0" if st == 0 else vr(DD + 4 * ct, 4)
            A(f"v_mfma_f32_16x16x32_bf16 {vr(DD + 4 * ct, 4)}, {vr(AO + 4 * st, 4)}, {vr(W0 + (ct * 4 + st) * 4, 4)}, {c}")
    A("s_nop 2")
    A(f"s_cmp_lg_u32 s{S_PH2}, 0")
    A("s_cbranch_scc1 L_tail")
    def pick(dst):
        for ct in range(8):
            A(f"v_mov_b32_dpp v{dst + (ct & 1)}, v{DD + 4 * ct} quad_perm:[0,1,2,3] row_mask:{1 << (ct >> 1):#x} bank_mask:0xf")
    pick(YS)
    stamp(3)
    wo_fetch()
    A(f"s_mov_b32 s{S_PH2}, 1")
    stamp(13)
    A("s_barrier")
    A.label("L_stage1")
    A.c("---- B stage 1: merge head hw over the 4 streamer waves, publish (o[128], m, l)")
    A(f"ds_read_b128 {vr(ML, 4)}, v{VS2} offset:{L_MLB}")
    A(f"ds_read_b128 {vr(ML + 4, 4)}, v{VS2} offset:{L_MLB + 16}")
    for w in range(4):
        A(f"ds_read_b128 {vr(PO + 4 * w, 4)}, v{VS1} offset:{L_PB + w * 2048}")
    stamp(4)
    A("s_waitcnt lgkmcnt(4)" if not ts else "s_waitcnt lgkmcnt(0)")
    merge_factors(False)
    A("s_waitcnt lgkmcnt(0)")
    merge_vals(4)
    A(f"s_mov_b64 exec, {sr(X_32 + 8, 2)}")
    A(f"v_mov_b32 v{PO}, v{MM}")
    A(f"v_mov_b32 v{PO+1}, v{LL}")
    A(f"s_mov_b64 exec, {sr(X_33 + 8, 2)}")
    sanitize([PO, PO + 1, PO + 2, PO + 3], VNAN)
    A(f"global_store_dwordx4 v{VSL}, {vr(PO, 4)}, {sr(P_WS, 2)} sc1")
    stamp(8)
    if pipe: gather2("p", [VS3], PO + 4, (8, 12))
    else: gather("p", [(PO + 4, VS3)], ppl[0], ppl[1], 64)
    A(f"ds_write_b128 v{RO+1}, {vr(PO + 4, 4)} offset:{L_P2}")
    A(f"s_mov_b64 exec, {sr(X_ALL + 8, 2)}")
    A("s_waitcnt lgkmcnt(0)")
    stamp(9)
    A("s_cbranch_execz L_nobar")
    A("s_barrier")
    A.label("L_nobar")
    for p in range(4):
        A(f"ds_read_b64 {vr(PO + 8 + 2 * p, 2)}, v{VM} offset:{L_P2 + p * 640 + 512}")
    for p in range(4):
        A(f"ds_read_b64 {vr(PO + 2 * p, 2)}, v{VP} offset:{L_P2 + p * 640}")
    A("s_waitcnt lgkmcnt(4)")
    for p in range(4):
        A(f"v_mov_b32 v{ML+p}, v{PO+8+2*p}")
        A(f"v_mov_b32 v{ML+4+p}, v{PO+9+2*p}")
    A("s_cbranch_execnz L_project")
    A.label("L_tail")
    pick(YS + 2)
    sanitize([YS, YS + 1, YS + 2, YS + 3], VNAN)
    A(f"global_store_dwordx4 v{VY}, {vr(YS, 4)}, {sr(P_WS, 2)} sc1")
    stamp(5)
    A(f"s_cmp_lg_u32 s{HW}, 0")
    A("s_cbranch_scc1 L_fin")
    if pipe: gather2("y", [RA + i for i in range(4)], PO, (28, 84))
    else: gather("y", [(PO + 4 * i, RA + i) for i in range(4)], psl[0], psl[1], psl[2])
    stamp(6)
    for i in (0, 2):
        A(f"v_pk_add_f32 {vr(PO + i, 2)}, {vr(PO + i, 2)}, {vr(PO + 4 + i, 2)}")
        A(f"v_pk_add_f32 {vr(PO + 8 + i, 2)}, {vr(PO + 8 + i, 2)}, {vr(PO + 12 + i, 2)}")
    for i in (0, 2):
        A(f"v_pk_add_f32 {vr(PO + i, 2)}, {vr(PO + i, 2)}, {vr(PO + 8 + i, 2)}")
    A("s_nop 0")
    A(f"v_add_f32_dpp v{H_T}, v{PO}, v{PO} row_ror:8 row_mask:0xf bank_mask:0x3")
    A(f"v_add_f32_dpp v{H_T+1}, v{PO+1}, v{PO+1} row_ror:8 row_mask:0xf bank_mask:0x3")
    A(f"v_add_f32_dpp v{H_T}, v{PO+2}, v{PO+2} row_ror:8 row_mask:0xf bank_mask:0xc")
    A(f"v_add_f32_dpp v{H_T+1}, v{PO+3}, v{PO+3} row_ror:8 row_mask:0xf bank_mask:0xc")
    A("s_nop 1")
    A(f"v_permlane16_swap_b32 v{H_T}, v{H_T+1}")
    A(f"v_add_f32 v{H_T}, v{H_T}, v{H_T+1}")
    A(f"v_mov_b32 v{H_T+1}, v{H_T}")
    A("s_nop 1")
    A(f"v_permlane32_swap_b32 v{H_T}, v{H_T+1}")
    A(f"v_add_f32 v{H_T}, v{H_T}, v{H_T+1}")
    A(f"v_cvt_pk_bf16_f32 v{H_T}, v{H_T}, v{H_T}")
    A("s_mov_b32 exec_hi, 0")
    if dry2: A("s_cbranch_execz L_dryret2")
    A(f"global_store_short v{RO}, v{H_T}, {sr(P_OUT, 2)} {outf}")
    if ts:
        A("s_waitcnt vmcnt(0)")
        stamp(7)
    A.label("L_fin")
    flush_stamps(True)
    A.label("L_end")
    A("s_endpgm")
    A.L += ['.section .rodata,"a"', ".p2align 6", f".amdhsa_kernel {NAME}",
            "  .amdhsa_next_free_vgpr 256", f"  .amdhsa_next_free_sgpr {96 if ts else 80}", "  .amdhsa_accum_offset 256",
            "  .amdhsa_group_segment_fixed_size 0", "  .amdhsa_kernarg_size 104", "  .amdhsa_user_sgpr_count 2",
            "  .amdhsa_user_sgpr_kernarg_segment_ptr 1", "  .amdhsa_system_sgpr_workgroup_id_x 1",
            "  .amdhsa_float_denorm_mode_32 3", ".end_amdhsa_kernel"]
    return A.text()

if __name__ == "__main__":
    out = sys.argv[1] if len(sys.argv) > 1 else "concat_heads__mha_block_cached__gqa_block_cached__decode.s"
    kw = {}
    for a in sys.argv[2:]:
        k, v = a.split("=", 1)
        try: v = int(v)
        except ValueError:
            if v.startswith("("): v = eval(v)
        kw[k] = v
    open(out, "w").write(gen(**kw))
```
